```python
import torch

def _softmax(x, axis=-1):
    return torch.softmax(x, dim=axis)

def _gelu(x):
    return torch.nn.functional.gelu(x, approximate='tanh')

def _silu(x):
    return torch.nn.functional.silu(x)

def _sigmoid(x):
    return torch.sigmoid(x)

def _layernorm(x, axis=-1, eps=1e-05):
    m = x.mean(dim=axis, keepdim=True)
    v = x.var(dim=axis, keepdim=True, unbiased=False)
    return (x - m) / torch.sqrt(v + eps)

def _scatter_add(tgt, idx, src, axis=0):
    return tgt.clone().index_add_(axis, idx, src)

def _segment_sum(src, seg, n):
    out = torch.zeros((n,) + src.shape[1:], dtype=src.dtype)
    return out.index_add_(0, seg, src)

def _pad(x, pw):
    flat = tuple((v for pair in reversed(pw) for v in pair))
    return torch.nn.functional.pad(x, flat)
kernel_name = 'standalone__video_timesformer__vision'

def setup_inputs():

    _w = lambda a: (lambda t: t.to(torch.bfloat16) if t.is_floating_point() else t)(torch.as_tensor(a))
    T = 7
    p = 14
    HW = 384 // p * p
    N = (HW // p) ** 2
    C = 192
    return {'x': _w((lambda *s: torch.randn(*s, dtype=torch.bfloat16) * 0.05)(1, T, N, C)), 'wqkv_t': _w((lambda *s: torch.randn(*s, dtype=torch.bfloat16) * 0.05)(C, 3 * C)), 'wo_t': _w((lambda *s: torch.randn(*s, dtype=torch.bfloat16) * 0.05)(C, C)), 'wqkv_s': _w((lambda *s: torch.randn(*s, dtype=torch.bfloat16) * 0.05)(C, 3 * C)), 'wo_s': _w((lambda *s: torch.randn(*s, dtype=torch.bfloat16) * 0.4)(C, C))}

def reference(x, wqkv_t, wo_t, wqkv_s, wo_s):
    B, T, N, C = x.shape
    scale = C ** (-0.5)
    xt = (lambda x, *d: x.permute(*d))(x, 0, 2, 1, 3).reshape(B * N, T, C)
    h = _layernorm(xt, axis=-1)
    qkv = h @ wqkv_t
    q, k, v = (qkv[..., :C].clone(), qkv[..., C:2 * C].clone(), qkv[..., 2 * C:].clone())
    a = _softmax(torch.einsum('btc,bsc->bts', q, k) * scale, axis=-1)
    xt = xt + torch.einsum('bts,bsc->btc', a, v) @ wo_t
    x1 = (lambda x, *d: x.permute(*d))(xt.reshape(B, N, T, C), 0, 2, 1, 3)
    xs = x1.reshape(B * T, N, C)
    h = _layernorm(xs, axis=-1)
    qkv = h @ wqkv_s
    q, k, v = (qkv[..., :C].clone(), qkv[..., C:2 * C].clone(), qkv[..., 2 * C:].clone())
    a = _softmax(torch.einsum('bnc,bmc->bnm', q, k) * scale, axis=-1)
    xs = xs + torch.einsum('bnm,bmc->bnc', a, v) @ wo_s
    return xs.reshape(B, T, N, C)
```

```python
import re

REG_RE = re.compile(r'(?<![\w.])([vas])(?:(\d+)\b|\[(\d+):(\d+)\])')


def regs_in(text):
    out = []
    for m in REG_RE.finditer(text):
        k = m.group(1)
        if m.group(2) is not None:
            out.append((k, int(m.group(2))))
        else:
            out += [(k, i) for i in range(int(m.group(3)), int(m.group(4)) + 1)]
    for sp in ('vcc', 'exec', 'm0'):
        if re.search(r'(?<![\w.])' + sp + r'\b', text):
            out.append(('x', sp))
    return out


def split_ops(s):
    ops, depth, cur = [], 0, ''
    for ch in s:
        if ch in '[(':
            depth += 1
        if ch in '])':
            depth -= 1
        if ch == ',' and depth == 0:
            ops.append(cur.strip())
            cur = ''
        else:
            cur += ch
    if cur.strip():
        ops.append(cur.strip())
    return ops


TRANS = ('v_exp_f32', 'v_log_f32', 'v_rcp_f32', 'v_rsq_f32', 'v_sqrt_f32')


class Ins:
    def __init__(self, text, tag=None):
        self.text = text
        self.tag = tag
        t = text.split(';')[0].strip()
        self.is_label = t.endswith(':')
        self.op = t.split()[0] if t and not self.is_label else ''
        rest = t[len(self.op):].strip() if self.op else ''
        ops = split_ops(rest)
        self.ops = ops
        op = self.op
        self.kind = 'other'
        rd, wr = [], []
        R = lambda i: regs_in(ops[i]) if i < len(ops) else []
        allr = lambda a: sum((R(i) for i in range(a, len(ops))), [])
        self.srcA = self.srcB = self.srcC = []
        self.passes = 0
        self.store_data = []
        if op.startswith('v_mfma'):
            self.kind = 'mfma'
            wr = R(0)
            self.srcA, self.srcB, self.srcC = R(1), R(2), R(3)
            rd = self.srcA + self.srcB + self.srcC
            self.passes = 8 if '32x32' in op else 4
        elif op.startswith('v_'):
            self.kind = 'valu'
            if op.startswith('v_cmp'):
                wr = R(0)
                rd = allr(1)
            elif op.startswith('v_permlane'):
                wr = R(0) + R(1)
                rd = R(0) + R(1)
            elif op.startswith('v_readfirstlane') or op.startswith('v_readlane'):
                wr = R(0)
                rd = allr(1)
            elif op.startswith('v_fmac') or op.startswith('v_fma_mixlo') or op.startswith('v_fma_mixhi') or op.startswith('v_dot2c') or '_dpp' in op:
                wr = R(0)
                rd = allr(0)
            elif op in ('v_nop',):
                pass
            else:
                wr = R(0)
                rd = allr(1)
                if op.startswith('v_add_co') or op.startswith('v_addc_co'):
                    wr = R(0) + R(1)
                    rd = allr(2)
        elif op.startswith('ds_read'):
            self.kind = 'ds'
            wr = R(0)
            rd = allr(1)
        elif op.startswith('ds_write'):
            self.kind = 'ds'
            rd = allr(0)
        elif op.startswith('buffer_load') or op.startswith('global_load'):
            self.kind = 'vm'
            if re.search(r'\blds\b', t):
                rd = allr(0) + [('x', 'm0')]
                self.is_dma = True
            else:
                wr = R(0)
                rd = allr(1)
        elif op.startswith('buffer_store') or op.startswith('buffer_atomic'):
            self.kind = 'vm'
            rd = allr(0)
            if 'x4' in op or 'x3' in op:
                self.store_data = R(0)
        elif op.startswith('global_store'):
            self.kind = 'vm'
            rd = allr(0)
            if 'x4' in op or 'x3' in op:
                self.store_data = R(1)
        elif op.startswith('s_load') or op.startswith('s_memtime') or op.startswith('s_memrealtime'):
            self.kind = 'smem'
            wr = R(0)
            rd = allr(1)
        elif op in ('s_waitcnt', 's_nop', 's_barrier', 's_endpgm', 's_sleep', 's_setprio', 's_branch') or op.startswith('s_cbranch'):
            self.kind = 'sctl'
        elif op.startswith('s_cmp') or op.startswith('s_bitcmp'):
            self.kind = 'salu'
            rd = allr(0)
        elif op.startswith('s_setpc'):
            self.kind = 'sctl'
            rd = allr(0)
        elif op.startswith('s_'):
            self.kind = 'salu'
            wr = R(0)
            rd = allr(1)
            if 'saveexec' in op:
                wr = wr + [('x', 'exec')]
        self.rd = set(rd)
        self.wr = set(wr)
        self.is_trans = any(op.startswith(x) for x in TRANS)
        self.is_dpp = '_dpp' in op or 'quad_perm' in t or 'row_' in t
        self.is_perm = op.startswith('v_permlane')
        self.is_rdlane = op.startswith('v_readfirstlane') or op.startswith('v_readlane')
        self.is_opsel = op.startswith('v_fma_mixlo') or op.startswith('v_fma_mixhi') or '_sdwa' in op
        self.is_dma = self.kind == 'vm' and bool(re.search(r'\blds\b', t))

    cond = False

    def states(self):
        if self.is_label or not self.op or self.cond:
            return 0
        if self.op == 's_nop':
            return int(self.ops[0]) + 1
        return 1


def need_states(p, c):
    n = 0
    if p.kind == 'valu':
        vw = {r for r in p.wr if r[0] in 'va'}
        sw = {r for r in p.wr if r[0] == 's' or r == ('x', 'vcc')}
        if vw:
            if c.kind == 'mfma' and vw & c.rd:
                n = max(n, 2)
            if c.kind == 'valu' and vw & c.rd:
                if c.is_dpp or c.is_perm:
                    n = max(n, 2)
                if c.is_rdlane:
                    n = max(n, 1)
                if p.is_trans and not c.is_trans:
                    n = max(n, 1)
            if p.is_opsel and c.kind == 'valu' and vw & (c.rd | c.wr):
                n = max(n, 1)
            if p.is_trans and c.kind in ('ds', 'vm') and vw & c.rd:
                n = max(n, 1)
        if sw:
            if c.kind == 'valu' and sw & c.rd:
                n = max(n, 4 if c.is_rdlane else 2)
            if c.kind == 'vm' and sw & c.rd:
                n = max(n, 5)
            if c.kind in ('salu', 'sctl') and sw & c.rd:
                n = max(n, 1)
    if p.kind == 'mfma':
        d = p.wr
        far = 8 if p.passes == 4 else 12
        if c.kind == 'mfma':
            if d & (set(c.srcA) | set(c.srcB)):
                n = max(n, far)
            if d & set(c.srcC):
                if not (set(c.srcC) == d and c.passes == p.passes):
                    n = max(n, p.passes + 2)
            elif d & c.wr:
                n = max(n, p.passes + 2)
        elif c.kind in ('valu', 'ds', 'vm'):
            if d & (c.rd | c.wr):
                n = max(n, far)
        if c.kind == 'valu' and set(p.srcC) & c.wr:
            n = max(n, 3 if p.passes == 4 else 7)
    if p.kind == 'salu' and ('x', 'm0') in p.wr and c.is_dma:
        n = max(n, 1)
    if p.store_data and set(p.store_data) & c.wr:
        n = max(n, 2)
    return n


class Prog:
    def __init__(self):
        self.ins = []
        self.vm = []
        self.lg = []
        self.smem = []
        self.nops_added = 0
        self.issued = {}

    def raw(self, text, tag=None, cond=False):
        i = Ins(text, tag)
        n0 = len(self.ins)
        self._pad(i)
        self.ins.append(i)
        if cond:
            for k in self.ins[n0:]:
                k.cond = True
        return i

    def _pad(self, c):
        if c.is_label or not c.op:
            return
        dist, need = 0, 0
        for p in reversed(self.ins[-40:]):
            if p.op:
                k = need_states(p, c)
                if k > dist:
                    need = max(need, k - dist)
            dist += p.states()
            if dist >= 20:
                break
        while need > 0:
            k = min(need, 16)
            self.ins.append(Ins(f's_nop {k-1}'))
            self.nops_added += k
            need -= k

    def _wait(self, vm=None, lg=None):
        parts = []
        if vm is not None:
            vm = min(vm, 63)
            if len(self.vm) > vm:
                parts.append(f'vmcnt({vm})')
                self.vm = self.vm[len(self.vm) - vm:] if vm else []
        if lg is not None:
            if self.smem:
                lg = 0
            lg = min(lg, 15)
            if len(self.lg) > lg or self.smem:
                parts.append(f'lgkmcnt({lg})')
                self.lg = self.lg[len(self.lg) - lg:] if lg else []
                self.smem = []
        if parts:
            self.raw('s_waitcnt ' + ' '.join(parts))

    def __call__(self, text, tag=None):
        if '\n' in text:
            for t in text.split('\n'):
                if t.strip():
                    self(t.strip(), tag)
            return
        i = Ins(text, tag)
        touch = i.rd | i.wr
        vm = lg = None
        for n, p in enumerate(self.vm):
            if p.wr & touch:
                vm = len(self.vm) - 1 - n
        for n, p in enumerate(self.lg):
            if p.wr & touch:
                lg = len(self.lg) - 1 - n
        for p in self.smem:
            if p.wr & touch:
                lg = 0
        self._wait(vm, lg)
        self._pad(i)
        self.ins.append(i)
        if i.tag is not None:
            self.issued[i.tag] = self.issued.get(i.tag, 0) + 1
        if i.kind == 'vm':
            self.vm.append(i)
        elif i.kind == 'ds':
            self.lg.append(i)
        elif i.kind == 'smem':
            self.smem.append(i)
        return i

    def need_vm(self, tag, count=None):
        if count is not None:
            assert self.issued.get(tag, 0) == count, f'{tag}: {self.issued.get(tag, 0)} of {count} issued'
        vm = None
        for n, p in enumerate(self.vm):
            if p.tag == tag:
                vm = len(self.vm) - 1 - n
        self._wait(vm, None)

    def need_lg(self, tag):
        lg = None
        for n, p in enumerate(self.lg):
            if p.tag == tag:
                lg = len(self.lg) - 1 - n
        self._wait(None, lg)

    def wait_all(self, vm=True, lg=True):
        self._wait(0 if vm else None, 0 if lg else None)

    def force_wait(self, text):
        self.raw('s_waitcnt ' + text)
        if 'vmcnt(0)' in text:
            self.vm = []
        if 'lgkmcnt(0)' in text:
            self.lg = []
            self.smem = []

    def barrier(self):
        self._wait(None, 0)
        self.raw('s_barrier')

    def label(self, name):
        self.ins.append(Ins(name + ':'))

    def comment(self, c):
        self.ins.append(Ins('; ' + c))

    def fork(self):
        q = Prog()
        q.vm, q.lg, q.smem = list(self.vm), list(self.lg), list(self.smem)
        q.ins = [Ins('; fork')]
        q._pre = self.ins[-40:]
        return q

    def text(self):
        return '\n'.join(('' if (i.is_label or not i.op) else '    ') + i.text for i in self.ins) + '\n'


def interleave(P, lead, fill, pattern=None):
    def do(x):
        if callable(x):
            x()
        else:
            P(x)
    n = len(lead)
    if pattern is None:
        pattern = [(len(fill) * (k + 1)) // n - (len(fill) * k) // n for k in range(n)]
    f = 0
    for k in range(n):
        do(lead[k])
        for _ in range(pattern[k]):
            if f < len(fill):
                do(fill[f])
                f += 1
    while f < len(fill):
        do(fill[f])
        f += 1
```

```python
import sys, math, struct
from asmfw import Prog, interleave

KNAME = 'standalone__video_timesformer__vision_kernel'
XBYTES = 1959552
FRAME_X = 279936
FS = 23 * 12288
WS_X1 = 0x200000
WS_AF = 0x400000
WS_BF = 0x412000
WS_FLG = 0x430000
WS_ABF = 0x438000
WS_DIAG = 0x500000
WS_REC = 0x600000
WS_OOB = 0x700000
X_OOB = 0x1F0000
NP1 = 184
NAB = 36
RING = 36864
HIMG, XIMG, OIMG, SIMG, STIMG = 110592, 123392, 136192, 148480, 151552
QIMG, MLIMG = 147456, 159744
SCALE_L2E = (192 ** -0.5) * math.log2(math.e)
THR = 16.0
SPIN = 1 << 20


def f2u(x):
    return struct.unpack('<I', struct.pack('<f', x))[0]


def hx(x):
    return '0x%x' % (x & 0xffffffff)


def vr(b, n=1):
    return f'v{b}' if n == 1 else f'v[{b}:{b+n-1}]'


def ar(b, n=1):
    return f'a{b}' if n == 1 else f'a[{b}:{b+n-1}]'


class Alloc:
    def __init__(self, start, end):
        self.p, self.end = start, end

    def __call__(self, n=1, al=1):
        self.p = (self.p + al - 1) // al * al
        r = self.p
        self.p += n
        assert self.p <= self.end, 'out of registers'
        return r


sWG, sW = 2, 3
rX, rW, rWO, rWS, rOUT, rDBG = 's[4:7]', 's[8:11]', 's[12:15]', 's[16:19]', 's[20:23]', 's[24:27]'
sT = list(range(28, 38))
sM1, sM2, sM3, sHI = 's[38:39]', 's[40:41]', 's[42:43]', 's[44:45]'
sSO = 46
sRB = 47
sX1 = 48
sOff = list(range(50, 56))
sCo = list(range(56, 60))
sRot = list(range(60, 64))
sB22 = 64
sTile = 65
sRet = 's[66:67]'
sCnt = 68
sAB = 69
sPC = 's[70:71]'
sEX = 's[72:73]'
sST0 = 74


class Gen:
    def __init__(self, two=False, diag=False, opts=None):
        self.two = two
        self.diag = diag
        self.o = dict(la1=4, la2=3)
        if opts:
            self.o.update(opts)
        self.nst = 0
        self.stamp_names = []
        self.sc = '' if two else ' sc1'
        V = Alloc(1, 256)
        g = self
        g.vXA = V(); g.vDW = [V() for _ in range(4)]; g.vDO = [V() for _ in range(4)]
        g.vHW = V(); g.vHR = V(); g.vXR = V(); g.vWR = [V(), V()]
        g.vL16 = V(); g.vSW = V(); g.vOW1 = V(); g.vSTW = V(); g.vSTR = V()
        g.vST = [V(), V()]; g.vM0 = V(); g.vM1 = V(); g.vFA = V(); g.vPA = V()
        g.vL16d = V(); g.vKR = [V(), V()]; g.vVR = [V(), V()]; g.vQR = [V() for _ in range(4)]
        g.vBR = V(); g.vQW = [V(), V()]; g.vMLW = V(); g.vMLR = V(); g.vPW = V(); g.vPR = [V() for _ in range(3)]
        g.vOW2 = V(); g.vFR = V(); g.vX1A = [V(), V()]; g.vOA = [V() for _ in range(3)]
        g.tmp = [V() for _ in range(11)]
        g.dum = [V(), V()]
        base = (V.p + 3) // 4 * 4
        A1 = Alloc(base, 256)
        g.accA = A1(32, 4); g.accB = A1(32, 4); g.accY = A1(32, 4)
        g.pkQ = A1(16, 4); g.pkK = A1(16, 4); g.vS = A1(16, 4); g.vP1 = A1(8, 4)
        g.xraw = A1(12, 4); g.sx = A1(16, 4)
        g.xf = g.accA
        g.hpk = g.accB
        g.pkV = g.pkK
        g.pkO = g.pkQ
        A2 = Alloc(base, 256)
        g.O = A2(96, 4); g.S = [A2(16, 4), A2(16, 4)]; g.CI = A2(20, 4); g.P = A2(8, 4)
        g.mref = A2(); g.la = A2(); g.lb = A2(); g.bm = A2(); g.gfac = A2(4, 4)
        g.x1r = A2(12, 4); g.ml = A2(8, 4)
        g.qacc = g.O
        g.qpk = g.O + 24
        g.facc = g.S[0]
        g.aH = 0
        g.aAB = 48
        g.aQ = 120
        g.aF = 168
        g.aPart = 200

    def stamp(self, P, name):
        if not self.diag or (self.diag is not True and name not in self.diag):
            return
        if name not in self.stamp_names:
            self.stamp_names.append(name)
        k = self.stamp_names.index(name)
        r = sST0 + 2 * k
        assert r + 1 <= 101
        P(f's_memtime s[{r}:{r+1}]')

    def dump_stamps(self, P, slot_base=0):
        if not self.diag:
            return
        P.force_wait('vmcnt(0) lgkmcnt(0)')
        t = self.tmp
        P(f's_lshl_b32 s28, s{sWG}, 2')
        P(f's_add_u32 s28, s28, s{sW}')
        P('s_lshl_b32 s28, s28, 7')
        P(f's_add_u32 s28, s28, {WS_DIAG + slot_base}')
        P(f'v_mov_b32 v{t[0]}, 0')
        for k in range(14):
            P(f'v_mov_b32 v{t[1]}, s{sST0 + 2*k}')
            P(f'buffer_store_dword v{t[1]}, v{t[0]}, {rWS}, s28 offen offset:{4*k}')
        P.force_wait('vmcnt(0)')

    def srd_consts(self, P, which):
        m = dict(X=(6, XBYTES), W=(10, 221184), WO=(14, 73728), WS=(18, WS_REC), OUT=(22, XBYTES), DBG=(26, 256))
        for k in which:
            r, n = m[k]
            P(f's_mov_b32 s{r}, {n}')
            P(f's_mov_b32 s{r+1}, 0x20000')

    def wave_lane(self, P):
        t = self.tmp
        P(f'v_lshrrev_b32 v{t[0]}, 6, v0')
        P('v_and_b32 v0, 63, v0')
        P(f'v_readfirstlane_b32 s{sW}, v{t[0]}')

    def code_prefetch(self, P, first, last):
        t = self.tmp
        P(f's_lshr_b32 s28, s{sWG}, 3')
        P('s_lshl_b32 s28, s28, 4')
        P(f'v_and_b32 v{t[1]}, 15, v0')
        P(f'v_add_u32 v{t[1]}, s28, v{t[1]}')
        P(f'v_lshlrev_b32 v{t[1]}, 7, v{t[1]}')
        P(f'v_min_u32 v{t[1]}, {last}-{first}_pc-4, v{t[1]}')
        P(f'global_load_dword v{self.dum[0]}, v{t[1]}, {sPC}')

    def poll(self, P, vaddr, rsrc, nlanes, name, sleep=0):
        t = self.tmp
        P(f's_mov_b64 exec, {hx((1 << nlanes) - 1)}' if nlanes <= 32 else f's_mov_b32 exec_lo, -1\ns_mov_b32 exec_hi, {hx((1 << (nlanes-32)) - 1)}')
        P(f's_mov_b32 s{sCnt}, 0')
        P.wait_all()
        P.label(name)
        if sleep:
            P(f's_sleep {sleep}')
        P(f'buffer_load_dword v{t[0]}, v{vaddr}, {rsrc}, 0 offen sc0 sc1')
        P(f's_add_u32 s{sCnt}, s{sCnt}, 1')
        P(f's_cmp_gt_u32 s{sCnt}, {SPIN}')
        P(f's_cbranch_scc1 {name}_out')
        P(f'v_cmp_ne_u32 vcc, 1, v{t[0]}')
        P('s_and_b64 exec, exec, vcc')
        P(f's_cbranch_execnz {name}')
        P.label(name + '_out')
        P.force_wait('vmcnt(0)')
        P('s_mov_b64 exec, -1')

    def addr_x(self, P):
        g, t = self, self.tmp
        P(f'v_lshrrev_b32 v{t[0]}, 5, v0')
        P(f'v_lshl_add_u32 v{t[0]}, s{sW}, 1, v{t[0]}')
        P(f'v_bfe_u32 v{t[1]}, v0, 3, 2')
        P(f'v_lshl_add_u32 v{t[1]}, s{sWG}, 2, v{t[1]}')
        P(f'v_mul_u32_u24 v{t[2]}, {FRAME_X}, v{t[0]}')
        P(f'v_mul_u32_u24 v{t[3]}, 384, v{t[1]}')
        P(f'v_and_b32 v{t[4]}, 7, v0')
        P(f'v_lshlrev_b32 v{t[4]}, 4, v{t[4]}')
        P(f'v_add3_u32 v{g.vXA}, v{t[2]}, v{t[3]}, v{t[4]}')
        P(f'v_cmp_gt_u32 vcc, 7, v{t[0]}')
        P(f'v_cmp_gt_u32 {sEX}, s29, v{t[1]}')
        P(f'v_mov_b32 v{t[5]}, {X_OOB}')
        P(f's_and_b64 vcc, vcc, {sEX}')
        P(f'v_cndmask_b32 v{g.vXA}, v{t[5]}, v{g.vXA}, vcc')

    def addr_dma(self, P):
        g, t = self, self.tmp
        P(f'v_lshrrev_b32 v{t[0]}, 3, v0')
        P(f'v_bfe_u32 v{t[1]}, v0, 4, 1')
        P(f'v_lshlrev_b32 v{t[1]}, 2, v{t[1]}')
        P(f'v_and_b32 v{t[2]}, 7, v0')
        P(f'v_xor_b32 v{t[1]}, v{t[1]}, v{t[2]}')
        P(f'v_lshlrev_b32 v{t[1]}, 4, v{t[1]}')
        P(f'v_lshl_add_u32 v{t[1]}, s{sW}, 7, v{t[1]}')
        P(f'v_mul_u32_u24 v{t[2]}, 1152, v{t[0]}')
        P(f'v_add_u32 v{g.vDW[0]}, v{t[2]}, v{t[1]}')
        for i in range(1, 4):
            P(f'v_add_u32 v{g.vDW[i]}, {8192*i}, v{g.vDW[0]}')
        return t[0], t[1]

    def addr_dma_o(self, P):
        g, t = self, self.tmp
        P(f'v_bfe_u32 v{t[1]}, v0, 4, 1')
        P(f'v_lshlrev_b32 v{t[1]}, 2, v{t[1]}')
        P(f'v_and_b32 v{t[2]}, 7, v0')
        P(f'v_xor_b32 v{t[1]}, v{t[1]}, v{t[2]}')
        P(f'v_lshlrev_b32 v{t[1]}, 4, v{t[1]}')
        P(f'v_lshl_add_u32 v{t[1]}, s{sW}, 7, v{t[1]}')
        P(f'v_lshrrev_b32 v{t[0]}, 5, v0')
        P(f'v_bfe_u32 v{t[2]}, v0, 3, 2')
        P(f'v_lshl_add_u32 v{t[0]}, v{t[0]}, 3, v{t[2]}')
        P(f'v_mul_u32_u24 v{t[0]}, 384, v{t[0]}')
        P(f'v_add_u32 v{g.vDO[0]}, v{t[0]}, v{t[1]}')
        for i in range(1, 4):
            P(f'v_add_u32 v{g.vDO[i]}, {(16*(i >> 1) + 4*(i & 1))*384 - 1024*i}, v{g.vDO[0]}')

    def addr_p1(self, P, helper):
        g, t = self, self.tmp
        P(f's_mul_i32 s{sRB}, s{sW}, {RING}')
        P(f'v_lshlrev_b32 v{g.vL16}, 4, v0')
        P(f'v_lshrrev_b32 v{t[0]}, 3, v0')
        P(f'v_lshl_add_u32 v{t[0]}, s{sW}, 3, v{t[0]}')
        P(f'v_mul_u32_u24 v{t[0]}, 400, v{t[0]}')
        P(f'v_and_b32 v{t[1]}, 7, v0')
        P(f'v_lshlrev_b32 v{t[1]}, 4, v{t[1]}')
        P(f'v_add_u32 v{t[0]}, {HIMG}, v{t[0]}')
        P(f'v_add_u32 v{g.vHW}, v{t[0]}, v{t[1]}')
        if helper:
            return
        self.addr_dma_o(P)
        P(f'v_and_b32 v{t[0]}, 31, v0')
        P(f'v_lshrrev_b32 v{t[1]}, 5, v0')
        P(f'v_mul_u32_u24 v{t[2]}, 400, v{t[0]}')
        P(f'v_add_u32 v{t[2]}, {HIMG}, v{t[2]}')
        P(f'v_lshl_add_u32 v{g.vHR}, v{t[1]}, 4, v{t[2]}')
        P(f'v_lshl_add_u32 v{t[2]}, v{t[1]}, 3, v{t[2]}')
        P(f'v_lshl_add_u32 v{g.vXR}, s{sW}, 7, v{t[2]}')
        P(f'v_lshlrev_b32 v{t[2]}, 4, v{t[0]}')
        P(f'v_add_u32 v{g.vSTR}, {STIMG}, v{t[2]}')
        P(f'v_lshl_add_u32 v{t[2]}, v{t[1]}, 3, v{g.vSTR}')
        P(f'v_lshl_add_u32 v{g.vSTW}, s{sW}, 9, v{t[2]}')
        P(f'v_bfe_u32 v{t[2]}, v0, 2, 2')
        P(f'v_lshlrev_b32 v{t[3]}, 10, v{t[1]}')
        P(f'v_lshl_add_u32 v{t[3]}, v{t[2]}, 7, v{t[3]}')
        P(f'v_bfe_u32 v{t[4]}, v0, 3, 1')
        P(f'v_lshl_add_u32 v{t[3]}, v{t[4]}, 6, v{t[3]}')
        P(f'v_bfe_u32 v{t[4]}, v0, 4, 1')
        P(f'v_lshl_add_u32 v{t[3]}, v{t[4]}, 5, v{t[3]}')
        P(f'v_and_b32 v{t[4]}, 3, v0')
        P(f'v_lshl_add_u32 v{t[3]}, v{t[4]}, 3, v{t[3]}')
        P(f'v_xor_b32 v{t[5]}, 64, v{t[3]}')
        P(f'v_add_u32 v{g.vWR[0]}, s{sRB}, v{t[3]}')
        P(f'v_add_u32 v{g.vWR[1]}, s{sRB}, v{t[5]}')
        P(f's_lshl_b32 s28, s{sW}, 10')
        P(f's_add_u32 s28, s28, {SIMG}')
        P(f'v_add_u32 v{g.vSW}, s28, v{g.vL16}')
        P(f's_lshl_b32 s28, s{sW}, 12')
        P(f's_add_u32 s28, s28, {OIMG}')
        P(f'v_add_u32 v{g.vOW1}, s28, v{g.vL16}')
        P(f'v_and_b32 v{t[2]}, 1, v0')
        P(f'v_lshlrev_b32 v{t[2]}, 4, v{t[2]}')
        P(f'v_mov_b32 v{t[3]}, 0xffff')
        P(f'v_lshlrev_b32 v{t[3]}, v{t[2]}, v{t[3]}')
        P('s_mov_b32 s38, 0x22222222\ns_mov_b32 s39, 0x22222222\ns_mov_b32 s40, 0x44444444\ns_mov_b32 s41, 0x44444444')
        P('s_mov_b32 s42, 0x88888888\ns_mov_b32 s43, 0x88888888')
        P('s_mov_b32 s30, 0x33333333\ns_mov_b32 s31, 0x33333333')
        P(f'v_cndmask_b32 v{g.vM0}, 0, v{t[3]}, s[30:31]')
        P(f'v_cndmask_b32 v{g.vM1}, v{t[3]}, 0, s[30:31]')
        P(f's_lshr_b32 s28, s{sWG}, 3')
        P('s_mul_i32 s28, s28, 12288')
        P(f's_lshl_b32 s30, s{sW}, 12')
        P('s_add_u32 s28, s28, s30')
        P(f's_and_b32 s30, s{sWG}, 7')
        P('s_lshl_b32 s31, s30, 7')
        P('s_add_u32 s28, s28, s31')
        P('s_bfe_u32 s30, s30, 0x10001')
        P(f'v_xor_b32 v{t[2]}, s30, v{t[1]}')
        P(f'v_lshlrev_b32 v{t[2]}, 6, v{t[2]}')
        P(f'v_lshl_add_u32 v{t[2]}, v{t[4]}, 4, v{t[2]}')
        P(f'v_lshrrev_b32 v{t[3]}, 2, v{t[0]}')
        P(f'v_mul_u32_u24 v{t[5]}, {FS}, v{t[3]}')
        P(f'v_add3_u32 v{t[2]}, v{t[2]}, v{t[5]}, s28')
        P(f'v_cmp_gt_u32 vcc, 7, v{t[3]}')
        P(f'v_mov_b32 v{t[5]}, {WS_OOB}')
        P(f'v_cndmask_b32 v{g.vST[0]}, v{t[5]}, v{t[2]}, vcc')
        P(f'v_xor_b32 v{g.vST[1]}, 128, v{g.vST[0]}')
        P(f's_mov_b32 s{sX1}, {WS_X1}')

    def addr_flags(self, P):
        g, t = self, self.tmp
        P(f's_lshr_b32 s28, s{sWG}, 3')
        P('s_lshl_b32 s28, s28, 7')
        P(f's_and_b32 s30, s{sWG}, 7')
        P('s_lshl_b32 s30, s30, 2')
        P('s_add_u32 s28, s28, s30')
        P(f's_add_u32 s28, s28, {WS_FLG}')
        P(f'v_lshl_add_u32 v{g.vFA}, v0, 12, s28')

    def addr_p2(self, P):
        g, t = self, self.tmp
        P(f's_mul_i32 s{sRB}, s{sW}, {RING}')
        P(f'v_lshlrev_b32 v{g.vL16}, 4, v0')
        P('s_mov_b32 s44, 0\ns_mov_b32 s45, -1')
        P(f's_and_b32 s30, s{sWG}, 7')
        P(f's_lshr_b32 s31, s{sWG}, 3')
        P(f's_mul_i32 s32, s30, {FS}')
        P(f's_add_u32 s{sB22}, s32, {22*12288}')

        def blk(dst, add_s, add_i):
            P(f's_add_u32 s33, s31, {add_i}')
            if add_s:
                P(f's_add_u32 s33, s33, s{add_s}')
            P('s_sub_u32 s34, s33, 23')
            P('s_min_u32 s33, s33, s34')
            P('s_mul_i32 s33, s33, 12288')
            P(f's_add_u32 s{dst}, s33, s32')
        for i in range(6):
            blk(sOff[i], sW, 4 * i)
        for w in range(4):
            blk(sCo[w], None, w)
            P(f's_add_u32 s33, s{sW}, {w}')
            P('s_and_b32 s33, s33, 3')
            P(f's_mul_i32 s{sRot[w]}, s33, 3072')
        P(f's_mov_b32 s{sTile}, s{sCo[0]}')
        P(f's_mul_i32 s{sAB}, s{sW}, 18432')
        P(f's_cmp_eq_u32 s{sW}, 3')
        P(f's_cselect_b32 s33, {WS_OOB}, 0')
        P(f'v_add_u32 v{g.vL16d}, s33, v{g.vL16}')
        if not self.two:
            P(f'v_lshrrev_b32 v{t[0]}, 3, v0')
            P(f'v_lshlrev_b32 v{t[1]}, 2, v{t[0]}')
            P(f'v_add_u32 v{t[1]}, s{sW}, v{t[1]}')
            P(f'v_cmp_gt_u32 vcc, 6, v{t[0]}')
            P(f'v_cndmask_b32 v{t[1]}, 0, v{t[1]}, vcc')
            P(f'v_add_u32 v{t[1]}, s31, v{t[1]}')
            P(f'v_subrev_u32 v{t[2]}, 23, v{t[1]}')
            P(f'v_min_u32 v{t[1]}, v{t[1]}, v{t[2]}')
            P(f'v_and_b32 v{t[2]}, 7, v0')
            P(f'v_lshlrev_b32 v{t[2]}, 2, v{t[2]}')
            P(f'v_lshl_add_u32 v{t[1]}, v{t[1]}, 7, v{t[2]}')
            P('s_lshl_b32 s33, s30, 12')
            P(f's_add_u32 s33, s33, {WS_FLG}')
            P(f'v_add_u32 v{g.vPA}, s33, v{t[1]}')
        P(f's_and_b32 s33, s{sW}, 1')
        h, key = t[0], t[1]
        P(f'v_lshrrev_b32 v{h}, 5, v0')
        P(f'v_and_b32 v{key}, 31, v0')
        P(f'v_lshrrev_b32 v{t[2]}, 2, v{key}')
        P(f'v_xor_b32 v{t[2]}, s33, v{t[2]}')
        P(f'v_lshlrev_b32 v{t[2]}, 7, v{t[2]}')
        P(f'v_bfe_u32 v{t[3]}, v0, 3, 1')
        P(f'v_xor_b32 v{t[3]}, v{t[3]}, v{h}')
        P(f'v_lshl_add_u32 v{t[2]}, v{t[3]}, 6, v{t[2]}')
        P(f'v_and_b32 v{t[4]}, 3, v0')
        P(f'v_lshl_add_u32 v{t[2]}, v{t[4]}, 4, v{t[2]}')
        P(f'v_xor_b32 v{t[3]}, 128, v{t[2]}')
        P(f'v_add_u32 v{g.vKR[0]}, s{sRB}, v{t[2]}')
        P(f'v_add_u32 v{g.vKR[1]}, s{sRB}, v{t[3]}')
        P(f'v_bfe_u32 v{t[2]}, v0, 4, 1')
        P(f'v_xor_b32 v{t[3]}, v{t[2]}, v{h}')
        P(f'v_xor_b32 v{t[3]}, s33, v{t[3]}')
        P(f'v_lshlrev_b32 v{t[3]}, 7, v{t[3]}')
        P(f'v_lshl_add_u32 v{t[3]}, v{t[2]}, 10, v{t[3]}')
        P(f'v_bfe_u32 v{t[5]}, v0, 1, 1')
        P(f'v_lshl_add_u32 v{t[3]}, v{t[5]}, 6, v{t[3]}')
        P(f'v_bfe_u32 v{t[5]}, v0, 2, 2')
        P(f'v_lshl_add_u32 v{t[3]}, v{t[5]}, 4, v{t[3]}')
        P(f'v_and_b32 v{t[6]}, 1, v0')
        P(f'v_lshl_add_u32 v{t[3]}, v{t[6]}, 3, v{t[3]}')
        P(f'v_xor_b32 v{t[6]}, 0x140, v{t[3]}')
        P(f'v_add_u32 v{g.vVR[0]}, s{sRB}, v{t[3]}')
        P(f'v_add_u32 v{g.vVR[1]}, s{sRB}, v{t[6]}')
        for k in range(4):
            P(f's_add_u32 s34, s{sRot[k]}, {QIMG}')
            P(f'v_add_u32 v{g.vQR[k]}, s34, v{g.vL16}')
        gray = t[7]
        P(f'v_lshrrev_b32 v{gray}, 1, v{t[5]}')
        P(f'v_xor_b32 v{t[8]}, v{gray}, v{t[2]}')
        P(f'v_xor_b32 v{gray}, v{gray}, v{t[5]}')
        P(f'v_xor_b32 v{t[9]}, v{gray}, v{h}')
        P(f'v_lshlrev_b32 v{t[9]}, 7, v{t[9]}')
        P(f'v_lshl_add_u32 v{t[9]}, v{h}, 10, v{t[9]}')
        P(f'v_lshl_add_u32 v{t[9]}, v{t[8]}, 6, v{t[9]}')
        P(f'v_lshl_add_u32 v{g.vBR}, v{t[4]}, 4, v{t[9]}')
        P(f'v_lshl_add_u32 v{t[8]}, v{gray}, 2, v{t[4]}')
        P(f's_mul_i32 s34, s{sW}, 3072')
        P(f's_add_u32 s34, s34, {QIMG}')
        P(f'v_lshl_add_u32 v{t[8]}, v{t[8]}, 4, s34')
        P(f'v_lshrrev_b32 v{t[9]}, 4, v0')
        P(f'v_lshl_add_u32 v{g.vQW[0]}, v{t[9]}, 9, v{t[8]}')
        P(f'v_lshl_add_u32 v{t[8]}, v{h}, 9, v{t[8]}')
        P(f'v_lshl_add_u32 v{t[8]}, v{t[2]}, 3, v{t[8]}')
        P(f'v_add_u32 v{g.vQW[1]}, 2048, v{t[8]}')
        P(f'v_add_u32 v{g.vOW2}, s34, v{g.vL16}')
        P(f'v_lshlrev_b32 v{t[8]}, 5, v{key}')
        P(f'v_add_u32 v{g.vMLR}, {MLIMG}, v{t[8]}')
        P(f'v_lshl_add_u32 v{g.vMLW}, s{sW}, 3, v{g.vMLR}')
        P(f'v_add_u32 v{g.vPW}, s{sRB}, v{g.vL16}')
        for d in range(1, 4):
            P(f's_add_u32 s34, s{sW}, {4-d}')
            P('s_and_b32 s34, s34, 3')
            P(f's_mul_i32 s34, s34, {RING}')
            P(f's_add_u32 s34, s34, {(d-1)*3072}')
            P(f'v_add_u32 v{g.vPR[d-1]}, s34, v{g.vL16}')
        tok = t[8]
        P(f'v_and_b32 v{tok}, 15, v0')
        P(f'v_lshlrev_b32 v{t[10]}, 4, v{tok}')
        P(f'v_lshl_add_u32 v{t[10]}, v{t[9]}, 9, v{t[10]}')
        P(f'v_add_u32 v{g.vFR}, {QIMG}, v{t[10]}')
        P(f's_mul_i32 s34, s{sW}, 3072')
        P(f's_add_u32 s34, s34, s{sTile}')
        P(f's_add_u32 s34, s34, {WS_X1}')
        P(f'v_xor_b32 v{t[3]}, s33, v{h}')
        P(f'v_xor_b32 v{t[3]}, v{t[3]}, v{t[5]}')
        P(f'v_lshlrev_b32 v{t[3]}, 7, v{t[3]}')
        P(f'v_lshl_add_u32 v{t[3]}, v{h}, 10, v{t[3]}')
        P(f'v_bfe_u32 v{t[6]}, v0, 3, 1')
        P(f'v_xor_b32 v{t[10]}, v{t[6]}, v{t[2]}')
        P(f'v_lshl_add_u32 v{t[3]}, v{t[10]}, 6, v{t[3]}')
        P(f'v_lshl_add_u32 v{t[3]}, v{t[4]}, 4, v{t[3]}')
        P(f'v_add_u32 v{g.vX1A[0]}, s34, v{t[3]}')
        P(f'v_xor_b32 v{t[3]}, s33, v{t[5]}')
        P(f'v_lshl_add_u32 v{t[3]}, v{t[2]}, 2, v{t[3]}')
        P(f'v_lshlrev_b32 v{t[3]}, 7, v{t[3]}')
        P(f'v_xor_b32 v{t[10]}, v{t[6]}, v{h}')
        P(f'v_lshl_add_u32 v{t[3]}, v{t[10]}, 6, v{t[3]}')
        P(f'v_lshl_add_u32 v{t[3]}, v{t[4]}, 4, v{t[3]}')
        P('s_add_u32 s34, s34, 2048')
        P(f'v_add_u32 v{g.vX1A[1]}, s34, v{t[3]}')
        P(f's_mul_i32 s34, s30, {FRAME_X}')
        P(f's_mul_i32 s35, s{sW}, 96')
        P('s_add_u32 s34, s34, s35')
        P('s_lshl_b32 s35, s31, 5')
        P('s_movk_i32 s36, 729')
        P(f'v_mov_b32 v{t[10]}, {X_OOB}')
        for k in range(3):
            if k < 2:
                P(f'v_add_u32 v{t[3]}, s35, v{tok}')
                if k == 1:
                    P(f'v_add_u32 v{t[3]}, 16, v{t[3]}')
                P(f'v_lshlrev_b32 v{t[6]}, 4, v{t[9]}')
            else:
                P(f'v_lshl_add_u32 v{t[3]}, v{t[2]}, 4, v{tok}')
                P(f'v_add_u32 v{t[3]}, s35, v{t[3]}')
                P(f'v_lshlrev_b32 v{t[6]}, 4, v{h}')
                P(f'v_add_u32 v{t[6]}, 64, v{t[6]}')
            P(f'v_cmp_gt_u32 vcc, s36, v{t[3]}')
            P(f'v_mul_u32_u24 v{t[3]}, 384, v{t[3]}')
            P(f'v_add3_u32 v{t[3]}, v{t[3]}, v{t[6]}, s34')
            P(f'v_cndmask_b32 v{g.vOA[k]}, v{t[10]}, v{t[3]}, vcc')

    def dma_group(self, P, G):
        g = self
        m, kk = divmod(G, 6)
        so = m * 384 + kk * 32 * 1152 if m < 3 else kk * 32 * 384
        out = []
        for i in range(4):
            def f(i=i):
                if i == 0:
                    assert G < 9 or (G - 9) in self.consumed, f'ring slot of group {G} still in use'
                    P(f's_mov_b32 s{sSO}, {so}')
                    P(f's_add_u32 m0, s{sRB}, {(G % 9) * 4096}')
                va, rs = (g.vDW[i], rW) if m < 3 else (g.vDO[i], rWO)
                P(f'buffer_load_dwordx4 v{va}, {rs}, s{sSO} offen offset:{1024*i} lds', tag=('w', G, i >> 1))
            out.append(f)
        return out

    def ln1_ops(self):
        g, t = self, self.tmp
        xf, xr, hp = g.xf, g.xraw, g.hpk
        ops = []
        for i in range(12):
            ops.append(f'v_lshlrev_b32 v{xf+2*i}, 16, v{xr+i}')
            ops.append(f'v_and_b32 v{xf+2*i+1}, 0xffff0000, v{xr+i}')
        s, q = g.sx, g.sx + 2
        ops.append(f'v_pk_add_f32 {vr(s,2)}, {vr(xf,2)}, {vr(xf+2,2)}')
        ops.append(f'v_pk_mul_f32 {vr(q,2)}, {vr(xf,2)}, {vr(xf,2)}')
        ops.append(f'v_pk_fma_f32 {vr(q,2)}, {vr(xf+2,2)}, {vr(xf+2,2)}, {vr(q,2)}')
        for i in range(2, 12):
            ops.append(f'v_pk_add_f32 {vr(s,2)}, {vr(s,2)}, {vr(xf+2*i,2)}')
            ops.append(f'v_pk_fma_f32 {vr(q,2)}, {vr(xf+2*i,2)}, {vr(xf+2*i,2)}, {vr(q,2)}')
        for i in range(3):
            ops.append(f'ds_write_b128 v{g.vHW}, {vr(xr+4*i,4)} offset:{XIMG-HIMG+128*i}')
        ops.append(f'v_add_f32 v{s}, v{s}, v{s+1}')
        ops.append(f'v_add_f32 v{q}, v{q}, v{q+1}')
        for ctl in ('quad_perm:[1,0,3,2]', 'quad_perm:[2,3,0,1]', 'row_half_mirror'):
            ops.append(f'v_add_f32_dpp v{s}, v{s}, v{s} {ctl} row_mask:0xf bank_mask:0xf')
            ops.append(f'v_add_f32_dpp v{q}, v{q}, v{q} {ctl} row_mask:0xf bank_mask:0xf')
        ops += self.ln_finish(s, q)
        for i in range(12):
            ops.append(f'v_pk_fma_f32 {vr(xf+2*i,2)}, {vr(xf+2*i,2)}, {vr(s,2)}, {vr(q,2)} op_sel_hi:[1,0,0]')
            if i:
                ops.append(f'v_cvt_pk_bf16_f32 v{hp+i-1}, v{xf+2*i-2}, v{xf+2*i-1}')
            if i in (5, 9):
                k = (i - 5) // 4
                ops.append(f'ds_write_b128 v{g.vHW}, {vr(hp+4*k,4)} offset:{128*k}')
        ops.append(f'v_cvt_pk_bf16_f32 v{hp+11}, v{xf+22}, v{xf+23}')
        ops.append(f'ds_write_b128 v{g.vHW}, {vr(hp+8,4)} offset:256')
        return ops

    def ln_finish(self, s, q):
        return [f'v_mul_f32 v{s}, {hx(f2u(1/192))}, v{s}',
                f'v_mul_f32 v{s+1}, v{s}, v{s}',
                f'v_mul_f32 v{q}, {hx(f2u(1/192))}, v{q}',
                f'v_sub_f32 v{q}, v{q}, v{s+1}',
                f'v_max_f32 v{q}, 0, v{q}',
                f'v_add_f32 v{q}, {hx(f2u(1e-5))}, v{q}',
                f'v_rsq_f32 v{q+1}, v{q}',
                f'v_mul_f32 v{q}, v{s}, v{q+1}',
                f'v_mov_b32 v{s}, v{q+1}',
                f'v_sub_f32 v{q}, 0, v{q}']

    def w_reads(self, P, n):
        g = self
        m, r = divmod(n, 24)
        s, ct = divmod(r, 2)
        G, sl = 6 * m + s // 2, s & 1
        P.need_vm(('w', G, sl), 2)
        a = g.aF + 4 * (n % 8)
        off = (G % 9) * 4096 + sl * 2048
        P(f'ds_read_b64_tr_b16 {ar(a,2)}, v{g.vWR[ct]} offset:{off}')
        P(f'ds_read_b64_tr_b16 {ar(a+2,2)}, v{g.vWR[ct]} offset:{off+512}')

    def gemm1(self, P, m, acc, fill, cinit0=True, pre=0, pattern=None):
        g = self
        LA = self.o['la1']
        for k in range(pre, LA):
            self.w_reads(P, 24 * m + k)
        lead = []
        for r in range(24):
            def f(r=r):
                n = 24 * m + r
                s, ct = divmod(r, 2)
                w, h = ar(g.aF + 4 * (n % 8), 4), ar(g.aH + 4 * s, 4)
                d = vr(acc + 16 * ct, 16)
                c = '0' if (s == 0 and cinit0) else d
                a, b = (h, w) if m == 2 else (w, h)
                P(f'v_mfma_f32_32x32x16_bf16 {d}, {a}, {b}, {c}')
                if r % 4 == 3:
                    self.consumed.add(6 * m + r // 4)
                if r + LA < 24:
                    self.w_reads(P, n + LA)
            lead.append(f)
        interleave(P, lead, fill, pattern)

    def pack16(self, dst, src):
        return [f'v_cvt_pk_bf16_f32 v{dst+i}, v{src+2*i}, v{src+2*i+1}' for i in range(16)]

    def phase1_compute(self, P):
        g, t = self, self.tmp
        self.consumed = set()
        D = lambda G: self.dma_group(P, G)
        self.addr_dma(P)
        P(f's_lshr_b32 s28, s{sWG}, 3')
        P('s_mul_i32 s28, s28, 3')
        P(f's_add_u32 s28, s28, s{sW}')
        P('s_mul_i32 s28, s28, 3328')
        P(f'v_min_u32 v{t[10]}, 25, v0')
        P(f'v_lshl_add_u32 v{t[10]}, v{t[10]}, 7, s28')
        P(f's_mul_i32 s{sRB}, s{sW}, {RING}')
        P.wait_all()
        self.stamp(P, 'karg')
        for i in range(3):
            P(f'buffer_load_dwordx4 {vr(g.xraw+4*i,4)}, v{g.vXA}, {rX}, 0 offen offset:{128*i}')
        P(f'buffer_load_dword v{g.dum[1]}, v{t[10]}, {rW}, 0 offen')
        for f in D(0):
            f()
        self.addr_p1(P, False)
        if not self.two:
            self.addr_p2(P)
        for f in D(1):
            f()
        ops = self.ln1_ops()
        P(ops[0])
        self.stamp(P, 'xin')
        dm = D(2) + D(3) + D(4)
        k = 0
        for n, op in enumerate(ops[1:]):
            P(op)
            if n % 8 == 7 and k < len(dm):
                dm[k]()
                k += 1
        while k < len(dm):
            dm[k]()
            k += 1
        P.barrier()
        self.stamp(P, 'bH')
        for s in range(12):
            P(f'ds_read_b128 {ar(g.aH+4*s,4)}, v{g.vHR} offset:{32*s}')
            if s == 3:
                for k in range(2):
                    self.w_reads(P, k)
        self.gemm1(P, 0, g.accA, D(5) + D(6) + D(7) + D(8) + D(9), pre=2)
        self.stamp(P, 'Q')
        xr = []
        for u in range(8):
            xr.append(f'ds_read_b64 {vr(g.vS+2*u,2)}, v{g.vXR} offset:{XIMG-HIMG+16*u}')
        un = []
        for u in range(16):
            un.append(f'v_lshlrev_b32 v{g.accY+2*u}, 16, v{g.vS+u}')
            un.append(f'v_and_b32 v{g.accY+2*u+1}, 0xffff0000, v{g.vS+u}')
        dm = D(10) + D(11) + D(12) + D(13) + D(14)
        va = xr + self.pack16(g.pkQ, g.accA) + un
        fill = []
        for k in range(len(dm)):
            fill.append(dm[k])
            fill += va[len(va) * k // len(dm): len(va) * (k + 1) // len(dm)]
        self.gemm1(P, 1, g.accB, fill)
        self.stamp(P, 'K')
        pk = self.pack16(g.pkK, g.accB)
        dm = D(15)
        for f in dm:
            f()
        for q in range(4):
            for op in pk[4*q:4*q+4]:
                P(op)
            P(f'v_mfma_f32_32x32x16_bf16 {vr(g.vS,16)}, {vr(g.pkK+4*q,4)}, {vr(g.pkQ+4*q,4)}, ' + ('0' if q == 0 else vr(g.vS, 16)))
        for k in range(self.o['la1']):
            self.w_reads(P, 48 + k)
        sx = g.sx
        for q in range(4):
            P(f'v_cndmask_b32 v{sx+q}, v{g.vS+4*q}, v{g.vS+4*q+1}, {sM1}')
        for q in range(4):
            P(f'v_cndmask_b32 v{sx+q}, v{sx+q}, v{g.vS+4*q+2}, {sM2}')
        for q in range(4):
            P(f'v_cndmask_b32 v{sx+q}, v{sx+q}, v{g.vS+4*q+3}, {sM3}')
        P(f'ds_write_b128 v{g.vSW}, {vr(sx,4)}')
        P.barrier()
        self.stamp(P, 'bS')
        P(f'v_add_u32 v{t[0]}, {SIMG}, v{g.vL16}')
        for k in range(3):
            P(f'ds_read_b128 {vr(g.vS+4*k,4)}, v{t[0]} offset:{1024*k}')
        sm = []
        S = g.vS
        for q in range(2):
            sm.append(f'v_pk_add_f32 {vr(S+2*q,2)}, {vr(S+2*q,2)}, {vr(S+4+2*q,2)}')
        for q in range(2):
            sm.append(f'v_pk_add_f32 {vr(S+2*q,2)}, {vr(S+2*q,2)}, {vr(S+8+2*q,2)}')
        sm.append(f'v_mov_b32 v{t[1]}, 0xff800000')
        sm.append('s_mov_b32 s44, 0\ns_mov_b32 s45, -1')
        sm.append(f'v_cndmask_b32 v{S+3}, v{S+3}, v{t[1]}, {sHI}')
        sm.append(f'v_max3_f32 v{t[1]}, v{S}, v{S+1}, v{S+2}')
        sm.append(f'v_max_f32 v{t[1]}, v{t[1]}, v{S+3}')
        sm.append(f'v_mov_b32 v{t[2]}, v{t[1]}')
        sm.append(f's_mov_b32 s28, {hx(f2u(SCALE_L2E))}')
        sm.append(f'v_permlane32_swap_b32 v{t[1]}, v{t[2]}')
        sm.append(f'v_max_f32 v{t[1]}, v{t[1]}, v{t[2]}')
        sm.append(f'v_mul_f32 v{t[1]}, s28, v{t[1]}')
        for q in range(4):
            sm.append(f'v_fma_f32 v{S+q}, v{S+q}, s28, -v{t[1]}')
        for q in range(4):
            sm.append(f'v_exp_f32 v{S+q}, v{S+q}')
        sm.append(f'v_add_f32 v{t[1]}, v{S}, v{S+1}')
        sm.append(f'v_add_f32 v{t[2]}, v{S+2}, v{S+3}')
        sm.append(f'v_add_f32 v{t[1]}, v{t[1]}, v{t[2]}')
        sm.append(f'v_mov_b32 v{t[2]}, v{t[1]}')
        sm.append(f'v_permlane32_swap_b32 v{t[1]}, v{t[2]}')
        sm.append(f'v_add_f32 v{t[1]}, v{t[1]}, v{t[2]}')
        sm.append(f'v_rcp_f32 v{t[1]}, v{t[1]}')
        for q in range(4):
            sm.append(f'v_mul_f32 v{S+q}, v{S+q}, v{t[1]}')
        for q in range(4):
            sm.append(f'v_cvt_pk_bf16_f32 v{S+q}, v{S+q}, v{S+q}')
        for q in range(4):
            sm.append(f'v_and_b32 v{g.vP1+2*q}, v{S+q}, v{g.vM0}')
            sm.append(f'v_and_b32 v{g.vP1+2*q+1}, v{S+q}, v{g.vM1}')
        dm = D(16) + D(17) + D(18) + D(19) + D(20)
        fill = []
        for k in range(len(dm)):
            fill.append(dm[k])
            if k >= 2:
                fill += sm[len(sm) * (k - 2) // (len(dm) - 2): len(sm) * (k - 1) // (len(dm) - 2)]
        self.gemm1(P, 2, g.accA, fill, pre=self.o['la1'])
        self.stamp(P, 'V')
        pk = self.pack16(g.pkV, g.accA)
        for f in D(21):
            f()
        for ct in range(2):
            for ks in range(2):
                q = 2 * ct + ks
                for op in pk[4*q:4*q+4]:
                    P(op)
                d = vr(g.accB + 16 * ct, 16)
                P(f'v_mfma_f32_32x32x16_bf16 {d}, {vr(g.pkV+4*q,4)}, {vr(g.vP1+4*ks,4)}, ' + ('0' if ks == 0 else d))
        for f in D(22):
            f()
        pk = self.pack16(g.pkO, g.accB)
        for q in range(4):
            for op in pk[4*q:4*q+4]:
                P(op)
            P(f'ds_write_b128 v{g.vOW1}, {vr(g.pkO+4*q,4)} offset:{1024*q}')
        P(f'v_add_u32 v{t[0]}, {OIMG}, v{g.vL16}')
        P.barrier()
        self.stamp(P, 'bO')
        for s in range(12):
            P(f'ds_read_b128 {ar(g.aH+4*s,4)}, v{t[0]} offset:{1024*s}')
            if s == 3:
                for k in range(2):
                    self.w_reads(P, 72 + k)
        self.gemm1(P, 3, g.accY, D(23), cinit0=False, pre=2, pattern=[1]*4 + [0]*20)
        self.stamp(P, 'Wo')
        Y = g.accY
        s, q = g.sx, g.sx + 2
        P(f'v_pk_add_f32 {vr(s,2)}, {vr(Y,2)}, {vr(Y+2,2)}')
        P(f'v_pk_mul_f32 {vr(q,2)}, {vr(Y,2)}, {vr(Y,2)}')
        P(f'v_pk_fma_f32 {vr(q,2)}, {vr(Y+2,2)}, {vr(Y+2,2)}, {vr(q,2)}')
        for i in range(2, 16):
            P(f'v_pk_add_f32 {vr(s,2)}, {vr(s,2)}, {vr(Y+2*i,2)}')
            P(f'v_pk_fma_f32 {vr(q,2)}, {vr(Y+2*i,2)}, {vr(Y+2*i,2)}, {vr(q,2)}')
        P(f'v_add_f32 v{s}, v{s}, v{s+1}')
        P(f'v_add_f32 v{s+1}, v{q}, v{q+1}')
        P(f'ds_write_b64 v{g.vSTW}, {vr(s,2)}')
        P.barrier()
        self.stamp(P, 'bST')
        st = g.vS
        for k in range(3):
            P(f'ds_read_b128 {vr(st+4*k,4)}, v{g.vSTR} offset:{512*k}')

        def store_img(pk, soff, tag):
            for qq in range(4):
                P(f'v_permlane32_swap_b32 v{pk+4*qq}, v{pk+4*qq+2}')
                P(f'v_permlane32_swap_b32 v{pk+4*qq+1}, v{pk+4*qq+3}')
                P(f'buffer_store_dwordx4 {vr(pk+4*qq,4)}, v{g.vST[qq & 1]}, {rWS}, {soff} offen offset:{1024*qq}{self.sc}', tag=tag)
        for op in self.pack16(g.pkQ, Y):
            P(op)
        store_img(g.pkQ, f's{sX1}', 'st')
        P(f'v_pk_add_f32 {vr(st,2)}, {vr(st,2)}, {vr(st+2,2)}')
        P(f'v_pk_add_f32 {vr(st+4,2)}, {vr(st+4,2)}, {vr(st+6,2)}')
        P(f'v_pk_add_f32 {vr(st+8,2)}, {vr(st+8,2)}, {vr(st+10,2)}')
        P(f'v_pk_add_f32 {vr(st,2)}, {vr(st,2)}, {vr(st+4,2)}')
        P(f'v_pk_add_f32 {vr(st,2)}, {vr(st,2)}, {vr(st+8,2)}')
        P(f'v_mov_b32 v{s}, v{st}')
        P(f'v_mov_b32 v{q}, v{st+1}')
        for op in self.ln_finish(s, q):
            P(op)
        for i in range(16):
            P(f'v_pk_fma_f32 {vr(Y+2*i,2)}, {vr(Y+2*i,2)}, {vr(s,2)}, {vr(q,2)} op_sel_hi:[1,0,0]')
        for op in self.pack16(g.pkK, Y):
            P(op)
        store_img(g.pkK, '0', 'st')
        self.stamp(P, 'stored')

    def load_ab(self, P, base, k):
        g = self
        if k % 4 == 0:
            P(f's_add_u32 s{sSO}, s{sAB}, {base + 1024 * k}')
        P(f'buffer_load_dwordx4 {ar(g.aAB+4*k,4)}, v{g.vL16}, {rWS}, s{sSO} offen offset:{1024*(k % 4)}{self.sc}', tag='ab')

    def phase1_helper(self, P):
        g, t = self, self.tmp
        P(f's_lshr_b32 s28, s{sWG}, 3')
        P('s_mul_i32 s28, s28, 3328')
        P(f'v_min_u32 v{t[10]}, 25, v0')
        P(f'v_lshl_add_u32 v{t[10]}, v{t[10]}, 7, s28')
        if not self.two:
            P(f'v_lshrrev_b32 v{t[0]}, 1, v0')
            P(f'v_lshlrev_b32 v{t[0]}, 7, v{t[0]}')
            P(f'v_and_b32 v{t[1]}, 1, v0')
            P(f'v_lshl_add_u32 v{t[0]}, v{t[1]}, 4, v{t[0]}')
            P(f'v_lshlrev_b32 v{t[1]}, 5, v0')
            P(f's_cmp_eq_u32 s{sWG}, 7')
            P('s_cselect_b64 vcc, -1, 0')
            P(f'v_cndmask_b32 v{t[0]}, v{t[0]}, v{t[1]}, vcc')
            P(f's_lshl_b32 s28, s{sWG}, 12')
            P(f's_add_u32 s28, s28, {WS_FLG}')
            P(f's_cmp_eq_u32 s{sWG}, 7')
            P(f's_cselect_b32 s28, {WS_ABF}, s28')
            P(f'v_add_u32 v{t[9]}, s28, v{t[0]}')
            for k in range(4):
                P(f'v_mov_b32 v{g.sx+k}, 0')
        P.wait_all()
        self.stamp(P, 'karg')
        if not self.two:
            P(f's_cmp_ge_u32 s{sWG}, 8')
            P('s_cbranch_scc1 L_noreset')
            P.raw(f'buffer_store_dwordx4 {vr(g.sx,4)}, v{t[9]}, {rWS}, 0 offen sc0 sc1', cond=True)
            P.label('L_noreset')
        for i in range(3):
            P(f'buffer_load_dwordx4 {vr(g.xraw+4*i,4)}, v{g.vXA}, {rX}, 0 offen offset:{128*i}')
        P(f'buffer_load_dword v{g.dum[1]}, v{t[10]}, {rWO}, 0 offen')
        self.addr_p1(P, True)
        if not self.two:
            self.addr_flags(P)
            self.addr_p2(P)
        ops = self.ln1_ops()
        P(ops[0])
        self.stamp(P, 'xin')
        if not self.two:
            P.force_wait('vmcnt(0)')
            P(f's_cmp_ge_u32 s{sWG}, 8')
            P('s_cbranch_scc1 L_nodone')
            P.raw(f's_lshl_b32 s28, s{sWG}, 2', cond=True)
            P.raw(f'v_mov_b32 v{t[0]}, 1', cond=True)
            P.raw(f'v_mov_b32 v{t[1]}, s28', cond=True)
            P.raw('s_mov_b64 exec, 1', cond=True)
            P.raw(f'buffer_store_dword v{t[0]}, v{t[1]}, {rDBG}, 0 offen sc0 sc1', cond=True)
            P.raw('s_mov_b64 exec, -1', cond=True)
            P.label('L_nodone')
        for op in ops[1:]:
            P(op)
        P.barrier()
        self.stamp(P, 'bH')
        if not self.two:
            P(f'v_lshlrev_b32 v{t[1]}, 2, v0')
            self.poll(P, t[1], rDBG, 8, 'L_pollD', sleep=2)
        P.barrier()
        P.barrier()
        if not self.two:
            P(f'v_lshlrev_b32 v{t[1]}, 5, v0')
            P(f'v_add_u32 v{t[1]}, {WS_ABF}, v{t[1]}')
            self.poll(P, t[1], rWS, NAB, 'L_pollAB', sleep=2)
        P.barrier()
        self.stamp(P, 'bST')

    def ab_path(self, P):
        g, t = self, self.tmp
        P('s_load_dwordx2 s[8:9], s[0:1], 24')
        P('s_load_dwordx2 s[12:13], s[0:1], 32')
        P('s_load_dwordx2 s[24:25], s[0:1], 48')
        P('s_load_dwordx2 s[16:17], s[0:1], 56')
        self.srd_consts(P, ['W', 'WO', 'WS', 'DBG'])
        self.wave_lane(P)
        P(f's_sub_u32 s28, s{sWG}, {NP1}')
        P('s_sub_u32 s29, s28, 18')
        P('s_min_u32 s29, s28, s29')
        P('s_lshl_b32 s29, s29, 2')
        P(f's_add_u32 s29, s29, s{sW}')
        P('s_mul_i32 s30, s29, 3641')
        P('s_lshr_b32 s30, s30, 16')
        P('s_mul_i32 s31, s30, 18')
        P('s_sub_u32 s31, s29, s31')
        P('s_mul_i32 s32, s31, 43')
        P('s_lshr_b32 s32, s32, 8')
        P('s_mul_i32 s33, s32, 6')
        P('s_sub_u32 s33, s31, s33')
        i16, qd, hi, lo = t[0], t[1], t[2], t[3]
        P(f'v_and_b32 v{i16}, 15, v0')
        P(f'v_lshrrev_b32 v{qd}, 4, v0')
        P(f'v_lshrrev_b32 v{hi}, 2, v{i16}')
        P(f'v_and_b32 v{lo}, 3, v0')
        P(f'v_lshlrev_b32 v{g.vL16}, 4, v0')
        A0 = g.accA
        B0 = g.accY
        D0 = g.pkQ
        P('s_cmp_ge_u32 s28, 18')
        P('s_cbranch_scc1 L_ab_B')
        Q = P.fork()
        P(f'v_lshl_add_u32 v{t[4]}, v{hi}, 3, v{lo}')
        P('s_lshl_b32 s34, s33, 5')
        P(f'v_add_u32 v{t[4]}, s34, v{t[4]}')
        P(f'v_mul_u32_u24 v{t[4]}, 1152, v{t[4]}')
        P(f'v_lshl_add_u32 v{t[4]}, v{qd}, 4, v{t[4]}')
        P(f'v_add_u32 v{t[5]}, {4*1152}, v{t[4]}')
        P(f'v_lshl_add_u32 v{t[6]}, v{hi}, 3, v{lo}')
        P('s_lshl_b32 s34, s32, 2')
        P(f'v_add_u32 v{t[6]}, s34, v{t[6]}')
        P(f'v_add_u32 v{t[7]}, 32, v{i16}')
        P('s_cmp_eq_u32 s32, 2')
        P('s_cselect_b64 vcc, -1, 0')
        P(f'v_cndmask_b32 v{t[6]}, v{t[6]}, v{t[7]}, vcc')
        P('s_mul_i32 s34, s30, 48')
        P(f'v_add_u32 v{t[6]}, s34, v{t[6]}')
        P(f'v_mul_u32_u24 v{t[6]}, 1152, v{t[6]}')
        P(f'v_lshl_add_u32 v{t[6]}, v{qd}, 4, v{t[6]}')
        P(f's_mov_b32 s35, {hx(f2u(SCALE_L2E))}')
        P(f's_mov_b32 s36, {WS_AF}')
        P.wait_all()
        for k in range(6):
            P(f'buffer_load_dwordx4 {vr(A0+8*k,4)}, v{t[4]}, {rW}, 0 offen offset:{64*k}')
            P(f'buffer_load_dwordx4 {vr(A0+8*k+4,4)}, v{t[5]}, {rW}, 0 offen offset:{64*k}')
            P(f'buffer_load_dwordx4 {vr(B0+4*k,4)}, v{t[6]}, {rW}, 0 offen offset:{384+64*k}')
        P.wait_all()
        P('s_branch L_ab_mm')
        Q.label('L_ab_B')
        Q(f'v_lshrrev_b32 v{t[4]}, 1, v{hi}')
        Q(f'v_lshlrev_b32 v{t[4]}, 4, v{t[4]}')
        Q(f'v_and_b32 v{t[5]}, 1, v{hi}')
        Q(f'v_lshl_add_u32 v{t[4]}, v{t[5]}, 2, v{t[4]}')
        Q(f'v_add_u32 v{t[4]}, v{t[4]}, v{lo}')
        Q('s_lshl_b32 s34, s33, 5')
        Q(f'v_add_u32 v{t[4]}, s34, v{t[4]}')
        Q(f'v_mul_u32_u24 v{t[4]}, 1152, v{t[4]}')
        Q(f'v_lshl_add_u32 v{t[4]}, v{qd}, 4, v{t[4]}')
        Q(f'v_add_u32 v{t[5]}, {8*1152}, v{t[4]}')
        Q('s_cmp_eq_u32 s32, 2')
        Q('s_cselect_b32 s34, 32, 0')
        Q('s_mul_i32 s35, s30, 96')
        Q('s_add_u32 s34, s34, s35')
        Q(f'v_lshrrev_b32 v{t[6]}, 2, v0')
        Q(f'v_mul_u32_u24 v{t[6]}, 384, v{t[6]}')
        Q(f'v_lshl_add_u32 v{t[6]}, v{lo}, 4, v{t[6]}')
        Q(f'v_add_u32 v{t[6]}, s34, v{t[6]}')
        Q(f's_mul_i32 s{sRB}, s{sW}, 12288')
        Q(f'v_lshl_add_u32 v{t[7]}, v{qd}, 3, v{hi}')
        Q(f'v_lshlrev_b32 v{t[7]}, 6, v{t[7]}')
        Q('s_cmp_eq_u32 s32, 2')
        Q('s_cselect_b32 s34, 3, 4')
        Q('s_cselect_b32 s35, 32, s32')
        Q('s_cselect_b32 s36, 0, 3')
        Q('s_lshl_b32 s35, s35, s36')
        Q(f's_add_u32 s35, s35, s{sRB}')
        Q(f'v_lshlrev_b32 v{t[8]}, s34, v{lo}')
        Q(f'v_add3_u32 v{t[7]}, v{t[7]}, v{t[8]}, s35')
        Q('s_mov_b32 s35, 1.0')
        Q(f's_mov_b32 s36, {WS_BF}')
        Q.wait_all()
        for k in range(12):
            Q(f's_add_u32 m0, s{sRB}, {1024*k}')
            Q(f's_mov_b32 s{sSO}, {16*384*k}')
            Q(f'buffer_load_dwordx4 v{t[6]}, {rWO}, s{sSO} offen lds', tag='wo')
        for k in range(6):
            Q(f'buffer_load_dwordx4 {vr(A0+8*k,4)}, v{t[4]}, {rW}, 0 offen offset:{768+64*k}')
            Q(f'buffer_load_dwordx4 {vr(A0+8*k+4,4)}, v{t[5]}, {rW}, 0 offen offset:{768+64*k}')
        Q.need_vm('wo')
        for k in range(6):
            Q(f'ds_read_b64_tr_b16 {vr(B0+4*k,2)}, v{t[7]} offset:{2048*k}')
            Q(f'ds_read_b64_tr_b16 {vr(B0+4*k+2,2)}, v{t[7]} offset:{2048*k+256}')
        Q.wait_all()
        Q.label('L_ab_mm')
        for k in range(6):
            for a in range(2):
                d = vr(D0 + 4 * a, 4)
                Q(f'v_mfma_f32_16x16x32_bf16 {d}, {vr(A0+8*k+4*a,4)}, {vr(B0+4*k,4)}, ' + ('0' if k == 0 else d))
        Q('s_lshl_b32 s29, s29, 10')
        Q('s_add_u32 s36, s36, s29')
        for k in range(8):
            Q(f'v_mul_f32 v{D0+k}, s35, v{D0+k}')
        for k in range(4):
            Q(f'v_cvt_pk_bf16_f32 v{D0+8+k}, v{D0+2*k}, v{D0+2*k+1}')
        Q(f'buffer_store_dwordx4 {vr(D0+8,4)}, v{g.vL16}, {rWS}, s36 offen{self.sc}')
        if not self.two:
            Q(f'v_lshlrev_b32 v{t[1]}, 2, v0')
            self.poll(Q, t[1], rDBG, 8, 'L_pollD2', sleep=2)
            Q.barrier()
            Q(f's_cmp_lg_u32 s{sW}, 0')
            Q('s_cbranch_scc1 L_exit')
            Q('s_lshl_b32 s28, s28, 5')
            Q(f's_add_u32 s28, s28, {WS_ABF}')
            Q(f'v_mov_b32 v{t[0]}, 1')
            Q(f'v_mov_b32 v{t[1]}, s28')
            Q('s_mov_b64 exec, 1')
            Q(f'buffer_store_dword v{t[0]}, v{t[1]}, {rWS}, 0 offen sc0 sc1')
        Q('s_endpgm')
        return Q

    def kv_dma(self, P, i):
        g = self
        out = []
        for k in range(12):
            def f(k=k):
                gq, kk = divmod(k, 3)
                if kk == 0:
                    P(f's_add_u32 m0, s{sRB}, {(i % 3) * 12288 + gq * 3072}')
                    P(f's_add_u32 s{sSO}, s{sOff[i]}, s{sRot[gq]}')
                va = g.vL16d if i == 5 else g.vL16
                P(f'buffer_load_dwordx4 v{va}, {rWS}, s{sSO} offen offset:{1024*kk}{self.sc} lds', tag=('kv', i, gq))
            out.append(f)
        return out

    def phase2(self, P):
        g, t = self, self.tmp
        LA = self.o['la2']
        for w in range(4):
            P(f's_mul_i32 s28, s{sW}, 3072')
            P(f's_add_u32 m0, s28, {w * RING}')
            P(f's_add_u32 s{sSO}, s{sCo[w]}, s{sRot[w]}')
            for kk in range(3):
                P(f'buffer_load_dwordx4 v{g.vL16}, {rWS}, s{sSO} offen offset:{1024*kk}{self.sc} lds', tag=('co', min(w, 1)))
        if self.two:
            for k in range(18):
                self.load_ab(P, WS_AF, k)
        CI = g.CI
        for k in range(16):
            P(f'v_mov_b32 v{CI+k}, 0')
        for k in range(1, 4):
            P(f'v_mov_b32 v{CI+16+k}, 0xff800000')
        P(f'v_cndmask_b32 v{CI+16}, 0, v{CI+17}, {sHI}')
        P(f'v_mov_b32 v{g.la}, 0')
        P(f'v_mov_b32 v{g.lb}, 0')
        P.need_vm(('co', 0))
        P.barrier()
        self.stamp(P, 'qtile')
        for s in range(6):
            for tt in range(2):
                P(f'ds_read_b128 {ar(g.aH+8*s+4*tt,4)}, v{g.vBR} offset:{2048*s+512*tt}')
        lead = []
        for s in range(6):
            for ct in range(3):
                for tt in range(2):
                    d = vr(g.qacc + 4 * (3 * tt + ct), 4)
                    lead.append(f'v_mfma_f32_16x16x32_bf16 {d}, {ar(g.aAB+4*(6*ct+s),4)}, {ar(g.aH+8*s+4*tt,4)}, ' + ('0' if s == 0 else d))
        interleave(P, lead, self.kv_dma(P, 1))
        for tt in range(2):
            for k in range(6):
                P(f'v_cvt_pk_bf16_f32 v{g.qpk+8*tt+k}, v{g.qacc+12*tt+2*k}, v{g.qacc+12*tt+2*k+1}')
            P(f'ds_write_b128 v{g.vQW[0]}, {vr(g.qpk+8*tt,4)} offset:{256*tt}')
            P(f'ds_write_b64 v{g.vQW[1]}, {vr(g.qpk+8*tt+4,2)} offset:{256*tt}')
        P.need_vm(('co', 1))
        P.barrier()
        self.stamp(P, 'qdone')

        steps = [('qk', 0, k) for k in range(12)]
        for i in range(5):
            steps += [('qk', i + 1, k) for k in range(12)]
            steps += [('pv', i, k) for k in range(12)]
        steps += [('pv', 5, k) for k in (10, 11, 8, 9, 6, 7, 4, 5, 2, 3, 0, 1)]
        NS = len(steps)

        def reads(n):
            kind, i, k = steps[n]
            a = g.aF + 4 * (n % 8)
            base = (i % 3) * 12288
            if kind == 'qk':
                P.need_vm(('kv', i, k // 3), 3 if i else 0)
                P(f'ds_read_b128 {ar(a,4)}, v{g.vKR[k & 1]} offset:{base + 1024*k}')
            else:
                tau, ks = divmod(k, 2)
                for u in range(2):
                    P(f'ds_read_b64_tr_b16 {ar(a+2*u,2)}, v{g.vVR[u]} offset:{base + 2048*tau + 512*ks}')

        def mfma(n):
            kind, i, k = steps[n]
            a = ar(g.aF + 4 * (n % 8), 4)
            if kind == 'qk':
                d = vr(g.S[i & 1], 16)
                b = ar(g.aQ + 4 * k, 4)
                if k == 0:
                    P(f's_cmp_eq_u32 s{sOff[i]}, s{sB22}')
                    P(f'v_mfma_f32_32x32x16_bf16 {d}, {a}, {b}, {vr(CI,16)}')
                    P(f's_cbranch_scc0 L_nm{i}')
                    P.raw(f'v_mfma_f32_32x32x16_bf16 {d}, {a}, {b}, {vr(CI+4,16)}', cond=True)
                    P.label(f'L_nm{i}')
                else:
                    P(f'v_mfma_f32_32x32x16_bf16 {d}, {a}, {b}, {d}')
            else:
                tau, ks = divmod(k, 2)
                d = vr(g.O + 16 * tau, 16)
                c = '0' if (i == 0 and ks == 0) else d
                P(f'v_mfma_f32_32x32x16_bf16 {d}, {a}, {vr(g.P+4*ks,4)}, {c}')

        def run(n0, n1, fill, pattern=None):
            lead = []
            for n in range(n0, n1):
                def f(n=n):
                    mfma(n)
                    if n + LA < NS:
                        reads(n + LA)
                lead.append(f)
            interleave(P, lead, fill, pattern)

        def softmax(i):
            S = g.S[i & 1]
            ex, cv, ad = [], [], []
            for r in range(16):
                ex.append(f'v_exp_f32 v{S+r}, v{S+r}')
                ad.append(f'v_add_f32 v{g.la if r % 2 == 0 else g.lb}, v{g.la if r % 2 == 0 else g.lb}, v{S+r}')
            for r in range(8):
                cv.append(f'v_cvt_pk_bf16_f32 v{g.P+r}, v{S+2*r}, v{S+2*r+1}')
            return ex, cv, ad

        def maxchain(i):
            S = g.S[i & 1]
            ops = [f'v_max3_f32 v{g.bm}, v{S}, v{S+1}, v{S+2}']
            for r in range(3, 15, 2):
                ops.append(f'v_max3_f32 v{g.bm}, v{g.bm}, v{S+r}, v{S+r+1}')
            ops.append(f'v_max_f32 v{g.bm}, v{g.bm}, v{S+15}')
            return ops

        for k in range(12):
            P(f'ds_read_b128 {ar(g.aQ+4*k,4)}, v{g.vQR[k // 3]} offset:{1024*(k % 3)}')
            if k == 2:
                for n in range(LA):
                    reads(n)
        run(0, 12, self.kv_dma(P, 2))
        S0 = g.S[0]
        for op in maxchain(0):
            P(op)
        P(f'v_mov_b32 v{t[0]}, v{g.bm}')
        P(f'v_permlane32_swap_b32 v{g.bm}, v{t[0]}')
        P(f'v_max_f32 v{g.mref}, v{g.bm}, v{t[0]}')
        for k in range(20):
            P(f'v_sub_f32 v{CI+k}, v{CI+k}, v{g.mref}')
        for k in range(16):
            P(f'v_sub_f32 v{S0+k}, v{S0+k}, v{g.mref}')
        self.stamp(P, 'r0')
        n = 12
        carry = []
        for i in range(5):
            ex, cv, ad = softmax(i)
            fill = list(carry)
            carry = []
            sm = []
            for r in range(8):
                sm += [ex[2*r], ex[2*r+1]]
                if r:
                    sm.append(cv[r-1])
                    sm.append(ad[r-1])
            sm += [ad[7], cv[7]]
            mix = []
            for k, op in enumerate(sm):
                if fill and k % 6 == 0:
                    mix.append(fill.pop(0))
                mix.append(op)
            mix += fill
            if i == 4:
                P(f's_cmp_lg_u32 s{sW}, 3')
                P('s_cbranch_scc1 L_w3a')
                for k in range(20):
                    P.raw(f'v_mov_b32 v{CI+k}, 0xff800000', cond=True)
                P.label('L_w3a')
            run(n, n + 12, mix)
            n += 12
            mx = maxchain(i + 1)
            if i <= 2:
                dm = self.kv_dma(P, i + 3)
                slots = {4: dm[0:1], 5: dm[1:2], 6: dm[2:4], 7: dm[4:5], 8: dm[5:6], 10: dm[6:8], 11: dm[8:9]}
                carry = dm[9:12]
            else:
                ld = []
                for k in range(9 * (i - 3), 9 * (i - 3) + 9):
                    ld.append(lambda k=k: self.load_ab(P, WS_BF, k))
                if i == 4:
                    ld.append(lambda: P(f'buffer_load_dwordx4 {vr(g.x1r,4)}, v{g.vX1A[0]}, {rWS}, 0 offen{self.sc}'))
                    ld.append(lambda: P(f'buffer_load_dwordx4 {vr(g.x1r+4,4)}, v{g.vX1A[0]}, {rWS}, 0 offen offset:512{self.sc}'))
                    ld.append(lambda: P(f'buffer_load_dwordx4 {vr(g.x1r+8,4)}, v{g.vX1A[1]}, {rWS}, 0 offen{self.sc}'))
                slots = {k: ld[k:k+1] for k in range(12)}
            fill, pattern = [], []
            for k in range(12):
                items = list(slots.get(k, []))
                if k < 4:
                    items += ad[8 + 2*k: 10 + 2*k]
                elif k < 8:
                    items += mx[2*(k-4): 2*(k-4) + 2]
                elif k == 8:
                    items.append(f'v_cmp_lt_f32 vcc, {hx(f2u(THR))}, v{g.bm}')
                fill += items
                pattern.append(len(items))
            run(n, n + 12, fill, pattern)
            n += 12
            P(f's_cbranch_vccnz L_slow{i}')
            P.label(f'L_ok{i}')
            self.stamp(P, f'r{i+1}') if i in (1, 4) else None
        ex, cv, ad = softmax(5)
        for r in range(8):
            P(ex[2*r]); P(ex[2*r+1])
            if r:
                P(cv[r-1]); P(ad[2*r-2]); P(ad[2*r-1])
        P(ad[14]); P(cv[7]); P(ad[15])
        ml = g.ml
        P(f'v_add_f32 v{g.la}, v{g.la}, v{g.lb}')
        P(f'v_mov_b32 v{t[0]}, v{g.la}')
        run(n, n + 1, [])
        P(f'v_permlane32_swap_b32 v{g.la}, v{t[0]}')
        P(f'v_mov_b32 v{ml}, v{g.mref}')
        P(f'v_add_f32 v{ml+1}, v{g.la}, v{t[0]}')
        P(f'ds_write_b64 v{g.vMLW}, {vr(ml,2)}', tag='ml')
        run(n + 1, n + 2, [])
        P.need_lg('ml')
        P.raw('s_barrier')
        P(f'ds_read_b128 {vr(ml,4)}, v{g.vMLR}')
        P(f'ds_read_b128 {vr(ml+4,4)}, v{g.vMLR} offset:16')
        run(n + 2, n + 4, [])
        gf = g.gfac
        fac = [f'v_max3_f32 v{t[0]}, v{ml}, v{ml+2}, v{ml+4}', f'v_max_f32 v{t[0]}, v{t[0]}, v{ml+6}']
        fac += [f'v_sub_f32 v{ml+2*k}, v{ml+2*k}, v{t[0]}' for k in range(4)]
        fac += [f'v_sub_f32 v{gf}, v{g.mref}, v{t[0]}']
        fac += [f'v_exp_f32 v{ml+2*k}, v{ml+2*k}' for k in range(4)]
        fac += [f'v_exp_f32 v{gf}, v{gf}']
        fac += [f'v_mul_f32 v{t[1]}, v{ml}, v{ml+1}']
        fac += [f'v_fmac_f32 v{t[1]}, v{ml+2*k}, v{ml+2*k+1}' for k in range(1, 4)]
        fac += [f'v_rcp_f32 v{t[1]}, v{t[1]}', f'v_mul_f32 v{gf}, v{gf}, v{t[1]}']
        run(n + 4, n + 7, fac)
        O = g.O
        pk = g.S[0]
        sc_ops = []
        cnt = 0
        for pr in range(11, 2, -1):
            dst = pk + 4 * (cnt % 4)
            cnt += 1
            for k in range(4):
                sc_ops.append(f'v_fma_mixlo_f16 v{dst+k}, v{O+8*pr+2*k}, v{gf}, 0')
            for k in range(4):
                sc_ops.append(f'v_fma_mixhi_f16 v{dst+k}, v{O+8*pr+2*k+1}, v{gf}, 0')
            d, p = divmod(pr, 3)
            sc_ops.append(f'ds_write_b128 v{g.vPW}, {vr(dst,4)} offset:{(d-1)*3072 + p*1024}')
        run(n + 7, n + 12, sc_ops[:20])
        for op in sc_ops[20:]:
            P(op)
        for k in range(24):
            P(f'v_mul_f32 v{O+k}, v{O+k}, v{gf}')
        P.barrier()
        self.stamp(P, 'bP')
        R = O + 24
        for p in range(3):
            for d in range(3):
                P(f'ds_read_b128 {vr(R+12*p+4*d,4)}, v{g.vPR[d]} offset:{1024*p}')
        F, X = g.facc, g.x1r
        P(f'v_permlane16_swap_b32 v{X+8}, v{X+10}')
        P(f'v_permlane16_swap_b32 v{X+9}, v{X+11}')
        for tt in range(2):
            for ct in range(3):
                src = X + 4 * tt + 2 * ct if ct < 2 else X + 8 + 2 * tt
                for k in range(2):
                    P(f'v_lshlrev_b32 v{F+4*(3*tt+ct)+2*k}, 16, v{src+k}')
                    P(f'v_and_b32 v{F+4*(3*tt+ct)+2*k+1}, 0xffff0000, v{src+k}')
        opk = O + 64
        for p in range(3):
            b = R + 12 * p
            for k in range(4):
                P(f'v_pk_add_f16 v{b+k}, v{b+k}, v{b+4+k}')
            for k in range(4):
                P(f'v_pk_add_f16 v{b+k}, v{b+k}, v{b+8+k}')
            for k in range(4):
                P(f'v_fma_mix_f32 v{O+8*p+2*k}, v{b+k}, 1.0, v{O+8*p+2*k} op_sel_hi:[1,0,0]')
                P(f'v_fma_mix_f32 v{O+8*p+2*k+1}, v{b+k}, 1.0, v{O+8*p+2*k+1} op_sel:[1,0,0] op_sel_hi:[1,0,0]')
            for k in range(4):
                P(f'v_cvt_pk_bf16_f32 v{opk+4*p+k}, v{O+8*p+2*k}, v{O+8*p+2*k+1}')
            P(f'ds_write_b128 v{g.vOW2}, {vr(opk+4*p,4)} offset:{1024*p}')
        P.barrier()
        self.stamp(P, 'bF')
        for s in range(6):
            for tt in range(2):
                P(f'ds_read_b128 {ar(g.aH+8*s+4*tt,4)}, v{g.vFR} offset:{2048*s+256*tt}')
        for s in range(6):
            for tt in range(2):
                for ct in range(3):
                    d = vr(F + 4 * (3 * tt + ct), 4)
                    P(f'v_mfma_f32_16x16x32_bf16 {d}, {ar(g.aAB+4*(6*ct+s),4)}, {ar(g.aH+8*s+4*tt,4)}, {d}')
        for tt in range(2):
            for k in range(4):
                P(f'v_cvt_pk_bf16_f32 v{opk+4*tt+k}, v{F+12*tt+2*k}, v{F+12*tt+2*k+1}')
            for k in range(2):
                P(f'v_cvt_pk_bf16_f32 v{opk+8+2*tt+k}, v{F+12*tt+8+2*k}, v{F+12*tt+8+2*k+1}')
            P(f'buffer_store_dwordx4 {vr(opk+4*tt,4)}, v{g.vOA[tt]}, {rOUT}, 0 offen')
        P(f'v_permlane16_swap_b32 v{opk+8}, v{opk+10}')
        P(f'v_permlane16_swap_b32 v{opk+9}, v{opk+11}')
        P(f'buffer_store_dwordx4 {vr(opk+8,4)}, v{g.vOA[2]}, {rOUT}, 0 offen')
        self.stamp(P, 'end')

    def rescale_subs(self):
        g, t = self, self.tmp
        out = ''
        for i in range(5):
            out += f'L_slow{i}:\n    s_call_b64 {sRet}, L_rescale{(i + 1) & 1}\n    s_branch L_ok{i}\n'
        for b in range(2):
            P = Prog()
            P.label(f'L_rescale{b}')
            P.raw('s_nop 15')
            P(f'v_mov_b32 v{t[0]}, v{g.bm}')
            P(f'v_permlane32_swap_b32 v{g.bm}, v{t[0]}')
            P(f'v_max3_f32 v{t[0]}, v{g.bm}, v{t[0]}, 0')
            P(f'v_exp_f32 v{t[1]}, -v{t[0]}')
            P(f'v_add_f32 v{g.mref}, v{g.mref}, v{t[0]}')
            for k in range(16):
                P(f'v_sub_f32 v{g.S[b]+k}, v{g.S[b]+k}, v{t[0]}')
            for k in range(20):
                P(f'v_sub_f32 v{g.CI+k}, v{g.CI+k}, v{t[0]}')
            P(f'v_mul_f32 v{g.la}, v{g.la}, v{t[1]}')
            P(f'v_mul_f32 v{g.lb}, v{g.lb}, v{t[1]}')
            for k in range(96):
                P(f'v_mul_f32 v{g.O+k}, v{g.O+k}, v{t[1]}')
            P.raw('s_nop 1')
            P(f's_setpc_b64 {sRet}')
            out += P.text()
        return out

    def kd(self, name):
        return f'''.section .rodata,"a"
.p2align 6
.amdhsa_kernel {name}
  .amdhsa_next_free_vgpr 512
  .amdhsa_next_free_sgpr 102
  .amdhsa_accum_offset 256
  .amdhsa_group_segment_fixed_size 0
  .amdhsa_kernarg_size 64
  .amdhsa_user_sgpr_count 2
  .amdhsa_user_sgpr_kernarg_segment_ptr 1
  .amdhsa_system_sgpr_workgroup_id_x 1
  .amdhsa_float_denorm_mode_32 3
.end_amdhsa_kernel
.text
'''

    def head(self, name):
        return f'.globl {name}\n.p2align 8\n.type {name},@function\n{name}:\n'

    def build(self):
        g, t = self, self.tmp
        name1 = 'p1_kernel' if self.two else KNAME
        P = Prog()
        if self.diag:
            P(f's_memrealtime s[{sST0}:{sST0+1}]')
            self.stamp_names.append('rt')
            self.stamp(P, 't0')
        P(f's_getpc_b64 {sPC}')
        P.label('L_code_pc')
        P(f's_cmp_ge_u32 s{sWG}, {NP1}')
        P('s_cbranch_scc1 L_ab')
        AB = P.fork()
        P('s_load_dwordx2 s[4:5], s[0:1], 0')
        P('s_load_dwordx2 s[8:9], s[0:1], 8')
        P('s_load_dwordx2 s[12:13], s[0:1], 16')
        P('s_load_dwordx2 s[16:17], s[0:1], 56')
        P('s_load_dwordx2 s[20:21], s[0:1], 40')
        P('s_load_dwordx2 s[24:25], s[0:1], 48')
        self.wave_lane(P)
        self.srd_consts(P, ['X', 'W', 'WO', 'WS', 'OUT', 'DBG'])
        P('s_movk_i32 s29, 729')
        self.addr_x(P)
        P(f's_cmp_eq_u32 s{sW}, 3')
        P('s_cbranch_scc1 L_helper')
        H = P.fork()
        self.phase1_compute(P)
        H.label('L_helper')
        self.code_prefetch(H, 'L_code', 'L_codeend')
        self.phase1_helper(H)
        if self.two:
            self.dump_stamps(P)
            P('s_endpgm')
            self.dump_stamps(H)
            H('s_endpgm')
        else:
            for k in range(18):
                self.load_ab(P, WS_AF, k)
            P.wait_all()
            P.barrier()
            P('s_branch L_join')
            for k in range(18):
                self.load_ab(H, WS_AF, k)
            H(f'v_mov_b32 v{t[2]}, 1')
            H.barrier()
            H('s_mov_b64 exec, 0x7f')
            H(f'buffer_store_dword v{t[2]}, v{g.vFA}, {rWS}, 0 offen sc0 sc1')
            H('s_mov_b64 exec, -1')
            H.label('L_join')
            self.stamp(H, 'flag')
            H(f's_and_b32 s28, s{sWG}, 7')
            H('s_cmp_eq_u32 s28, 7')
            H('s_cbranch_scc1 L_fin')
            self.poll(H, g.vPA, rWS, 56, 'L_pollF')
            self.stamp(H, 'polled')
            self.phase2(H)
            H.label('L_fin')
            self.dump_stamps(H)
            H.label('L_exit')
            H('s_endpgm')
        AB.label('L_ab')
        AB(f's_cmp_ge_u32 s{sWG}, {NP1 + NAB}')
        AB('s_cbranch_scc1 L_exit')
        AB2 = self.ab_path(AB)
        if self.two:
            body1 = P.text() + H.text() + AB.text() + AB2.text() + 'L_exit:\n    s_endpgm\nL_codeend:\n'
            K = Prog()
            self.stamp_names1 = list(self.stamp_names)
            self.stamp_names = []
            if self.diag:
                K(f's_memrealtime s[{sST0}:{sST0+1}]')
                self.stamp_names.append('rt')
                self.stamp(K, 't0')
            K(f's_getpc_b64 {sPC}')
            K.label('L_code2_pc')
            K(f's_cmp_ge_u32 s{sWG}, {NP1}')
            K('s_cbranch_scc1 L_exit2')
            K(f's_and_b32 s28, s{sWG}, 7')
            K('s_cmp_eq_u32 s28, 7')
            K('s_cbranch_scc1 L_exit2')
            K('s_load_dwordx2 s[16:17], s[0:1], 56')
            K('s_load_dwordx2 s[20:21], s[0:1], 40')
            self.wave_lane(K)
            self.srd_consts(K, ['WS', 'OUT'])
            self.code_prefetch(K, 'L_code2', 'L_codeend2')
            self.addr_p2(K)
            K.wait_all(vm=False)
            self.stamp(K, 'karg')
            self.phase2(K)
            self.dump_stamps(K, 0x20000)
            K.label('L_exit2')
            K('s_endpgm')
            body2 = K.text() + self.rescale_subs() + 'L_codeend2:\n    s_endpgm\n'
            hdr = (f'; @launch kernel=p1_kernel grid=({NP1+NAB},1,1) block=(256,1,1) lds=163840\n'
                   f'; @launch kernel=p2_kernel grid=({NP1},1,1) block=(256,1,1) lds=163840\n')
            txt = self.head('p1_kernel') + body1 + self.kd('p1_kernel') + self.head('p2_kernel') + body2 + self.kd('p2_kernel')
        else:
            body = P.text() + H.text() + AB.text() + AB2.text() + self.rescale_subs() + 'L_codeend:\n    s_endpgm\n'
            hdr = f'; @launch grid=({NP1+NAB},1,1) block=(256,1,1) lds=163840\n'
            txt = self.head(name1) + body + self.kd(name1)
        return hdr + '.amdgcn_target "amdgcn-amd-amdhsa--gfx950"\n.text\n' + txt


if __name__ == '__main__':
    import argparse
    ap = argparse.ArgumentParser()
    ap.add_argument('-o', default='standalone__video_timesformer__vision.s')
    ap.add_argument('--two', action='store_true')
    ap.add_argument('--diag', default='')
    a = ap.parse_args()
    G = Gen(two=a.two, diag=a.diag.split(',') if a.diag else False)
    s = G.build()
    open(a.o, 'w').write(s)
    print('written', a.o, len(s), 'bytes; stamps', G.stamp_names)
```

```python
import sys, math, struct
from asmfw import Prog, interleave

KNAME = 'standalone__video_timesformer__vision_kernel'
XBYTES = 1959552
FRAME_X = 279936
FS = 23 * 12288
WS_X1 = 0x200000
WS_AF = 0x400000
WS_BF = 0x412000
WS_FLG = 0x430000
WS_ABF = 0x438000
WS_DIAG = 0x500000
WS_REC = 0x600000
WS_OOB = 0x700000
X_OOB = 0x1F0000
NP1 = 184
NAB = 36
RING = 36864
HIMG, XIMG, OIMG, SIMG, STIMG = 110592, 123392, 136192, 148480, 151552
QIMG, MLIMG = 147456, 159744
SCALE_L2E = (192 ** -0.5) * math.log2(math.e)
THR = 16.0
SPIN = 1 << 20


def f2u(x):
    return struct.unpack('<I', struct.pack('<f', x))[0]


def hx(x):
    return '0x%x' % (x & 0xffffffff)


def vr(b, n=1):
    return f'v{b}' if n == 1 else f'v[{b}:{b+n-1}]'


def ar(b, n=1):
    return f'a{b}' if n == 1 else f'a[{b}:{b+n-1}]'


class Alloc:
    def __init__(self, start, end):
        self.p, self.end = start, end

    def __call__(self, n=1, al=1):
        self.p = (self.p + al - 1) // al * al
        r = self.p
        self.p += n
        assert self.p <= self.end, 'out of registers'
        return r


sWG, sW = 2, 3
rX, rW, rWO, rWS, rOUT, rDBG = 's[4:7]', 's[8:11]', 's[12:15]', 's[16:19]', 's[20:23]', 's[24:27]'
sT = list(range(28, 38))
sM1, sM2, sM3, sHI = 's[38:39]', 's[40:41]', 's[42:43]', 's[44:45]'
sSO = 46
sRB = 47
sX1 = 48
sOff = list(range(50, 56))
sCo = list(range(56, 60))
sRot = list(range(60, 64))
sB22 = 64
sTile = 65
sRet = 's[66:67]'
sCnt = 68
sAB = 69
sPC = 's[70:71]'
sEX = 's[72:73]'
sST0 = 74


class Gen:
    def __init__(self, two=False, diag=False, opts=None):
        self.two = two
        self.diag = diag
        self.o = dict(la1=4, la2=3)
        if opts:
            self.o.update(opts)
        self.nst = 0
        self.stamp_names = []
        self.sc = '' if two else ' sc1'
        V = Alloc(1, 256)
        g = self
        g.vXA = V(); g.vDW = [V() for _ in range(4)]; g.vDO = [V() for _ in range(4)]
        g.vHW = V(); g.vHR = V(); g.vXR = V(); g.vWR = [V(), V()]
        g.vL16 = V(); g.vSW = V(); g.vOW1 = V(); g.vSTW = V(); g.vSTR = V()
        g.vST = [V(), V()]; g.vM0 = V(); g.vM1 = V(); g.vFA = V(); g.vPA = V()
        g.vL16d = V(); g.vKR = [V(), V()]; g.vVR = [V(), V()]; g.vQR = [V() for _ in range(4)]
        g.vBR = V(); g.vQW = [V(), V()]; g.vMLW = V(); g.vMLR = V(); g.vPW = V(); g.vPR = [V() for _ in range(3)]
        g.vOW2 = V(); g.vFR = V(); g.vX1A = [V(), V()]; g.vOA = [V() for _ in range(3)]
        g.tmp = [V() for _ in range(11)]
        g.dum = [V(), V()]
        base = (V.p + 3) // 4 * 4
        A1 = Alloc(base, 256)
        g.accA = A1(32, 4); g.accB = A1(32, 4); g.accY = A1(32, 4)
        g.pkQ = A1(16, 4); g.pkK = A1(16, 4); g.vS = A1(16, 4); g.vP1 = A1(8, 4)
        g.xraw = A1(12, 4); g.sx = A1(16, 4)
        g.xf = g.accA
        g.hpk = g.accB
        g.pkV = g.pkK
        g.pkO = g.pkQ
        A2 = Alloc(base, 256)
        g.O = A2(96, 4); g.S = [A2(16, 4), A2(16, 4)]; g.CI = A2(20, 4); g.P = A2(8, 4)
        g.mref = A2(); g.la = A2(); g.lb = A2(); g.bm = A2(); g.gfac = A2(4, 4)
        g.x1r = A2(12, 4); g.ml = A2(8, 4)
        g.qacc = g.O
        g.qpk = g.O + 24
        g.facc = g.S[0]
        g.aH = 0
        g.aAB = 48
        g.aQ = 120
        g.aF = 168
        g.aPart = 200

    def stamp(self, P, name):
        if self.o.get('amp') == name:
            P('s_memrealtime s[76:77]')
        if not self.diag or (self.diag is not True and name not in self.diag):
            return
        if name not in self.stamp_names:
            self.stamp_names.append(name)
        k = self.stamp_names.index(name)
        r = sST0 + 2 * k
        assert r + 1 <= 101
        P(f's_memtime s[{r}:{r+1}]')

    def amp_spin(self, P):
        if not self.o.get('amp'):
            return
        P.force_wait('vmcnt(0) lgkmcnt(0)')
        P(f's_cmp_lg_u32 s{sWG}, {self.o.get("ampwg", 8)}')
        P('s_cbranch_scc1 L_ampdone')
        P(f's_cmp_lg_u32 s{sW}, 0')
        P('s_cbranch_scc1 L_ampdone')
        P('s_memrealtime s[78:79]')
        P('s_sub_u32 s76, s76, s74')
        P('s_mul_i32 s76, s76, 20')
        P('s_min_u32 s76, s76, 100000')
        P('s_add_u32 s76, s76, s78')
        P.label('L_ampspin')
        P('s_memrealtime s[78:79]')
        P('s_sub_u32 s80, s78, s76')
        P('s_cmp_lt_i32 s80, 0')
        P('s_cbranch_scc1 L_ampspin')
        P.label('L_ampdone')

    def dump_stamps(self, P, slot_base=0):
        if not self.diag:
            return
        P.force_wait('vmcnt(0) lgkmcnt(0)')
        t = self.tmp
        P(f's_lshl_b32 s28, s{sWG}, 2')
        P(f's_add_u32 s28, s28, s{sW}')
        P('s_lshl_b32 s28, s28, 7')
        P(f's_add_u32 s28, s28, {WS_DIAG + slot_base}')
        P(f'v_mov_b32 v{t[0]}, 0')
        for k in range(14):
            P(f'v_mov_b32 v{t[1]}, s{sST0 + 2*k}')
            P(f'buffer_store_dword v{t[1]}, v{t[0]}, {rWS}, s28 offen offset:{4*k}')
        P.force_wait('vmcnt(0)')

    def srd_consts(self, P, which):
        m = dict(X=(6, XBYTES), W=(10, 221184), WO=(14, 73728), WS=(18, WS_REC), OUT=(22, XBYTES), DBG=(26, 256))
        for k in which:
            r, n = m[k]
            P(f's_mov_b32 s{r}, {n}')
            P(f's_mov_b32 s{r+1}, 0x20000')

    def wave_lane(self, P):
        t = self.tmp
        P(f'v_lshrrev_b32 v{t[0]}, 6, v0')
        P('v_and_b32 v0, 63, v0')
        P(f'v_readfirstlane_b32 s{sW}, v{t[0]}')

    def code_prefetch(self, P, first, last):
        t = self.tmp
        P(f's_lshr_b32 s28, s{sWG}, 3')
        P('s_lshl_b32 s28, s28, 4')
        P(f'v_and_b32 v{t[1]}, 15, v0')
        P(f'v_add_u32 v{t[1]}, s28, v{t[1]}')
        P(f'v_lshlrev_b32 v{t[1]}, 7, v{t[1]}')
        P(f'v_min_u32 v{t[1]}, {last}-{first}_pc-4, v{t[1]}')
        P(f'global_load_dword v{self.dum[0]}, v{t[1]}, {sPC}')

    def poll(self, P, vaddr, rsrc, nlanes, name, sleep=0):
        t = self.tmp
        P(f's_mov_b64 exec, {hx((1 << nlanes) - 1)}' if nlanes <= 32 else f's_mov_b32 exec_lo, -1\ns_mov_b32 exec_hi, {hx((1 << (nlanes-32)) - 1)}')
        P(f's_mov_b32 s{sCnt}, 0')
        P.wait_all()
        P.label(name)
        if sleep:
            P(f's_sleep {sleep}')
        P(f'buffer_load_dword v{t[0]}, v{vaddr}, {rsrc}, 0 offen sc0 sc1')
        P(f's_add_u32 s{sCnt}, s{sCnt}, 1')
        P(f's_cmp_gt_u32 s{sCnt}, {SPIN}')
        P(f's_cbranch_scc1 {name}_out')
        P(f'v_cmp_ne_u32 vcc, 1, v{t[0]}')
        P('s_and_b64 exec, exec, vcc')
        P(f's_cbranch_execnz {name}')
        P.label(name + '_out')
        P.force_wait('vmcnt(0)')
        P('s_mov_b64 exec, -1')

    def addr_x(self, P):
        g, t = self, self.tmp
        P(f'v_lshrrev_b32 v{t[0]}, 5, v0')
        P(f'v_lshl_add_u32 v{t[0]}, s{sW}, 1, v{t[0]}')
        P(f'v_bfe_u32 v{t[1]}, v0, 3, 2')
        P(f'v_lshl_add_u32 v{t[1]}, s{sWG}, 2, v{t[1]}')
        P(f'v_mul_u32_u24 v{t[2]}, {FRAME_X}, v{t[0]}')
        P(f'v_mul_u32_u24 v{t[3]}, 384, v{t[1]}')
        P(f'v_and_b32 v{t[4]}, 7, v0')
        P(f'v_lshlrev_b32 v{t[4]}, 4, v{t[4]}')
        P(f'v_add3_u32 v{g.vXA}, v{t[2]}, v{t[3]}, v{t[4]}')
        P(f'v_cmp_gt_u32 vcc, 7, v{t[0]}')
        P(f'v_cmp_gt_u32 {sEX}, s29, v{t[1]}')
        P(f'v_mov_b32 v{t[5]}, {X_OOB}')
        P(f's_and_b64 vcc, vcc, {sEX}')
        P(f'v_cndmask_b32 v{g.vXA}, v{t[5]}, v{g.vXA}, vcc')

    def addr_dma(self, P):
        g, t = self, self.tmp
        P(f'v_lshrrev_b32 v{t[0]}, 3, v0')
        P(f'v_bfe_u32 v{t[1]}, v0, 4, 1')
        P(f'v_lshlrev_b32 v{t[1]}, 2, v{t[1]}')
        P(f'v_and_b32 v{t[2]}, 7, v0')
        P(f'v_xor_b32 v{t[1]}, v{t[1]}, v{t[2]}')
        P(f'v_lshlrev_b32 v{t[1]}, 4, v{t[1]}')
        P(f'v_lshl_add_u32 v{t[1]}, s{sW}, 7, v{t[1]}')
        P(f'v_mul_u32_u24 v{t[2]}, 1152, v{t[0]}')
        P(f'v_add_u32 v{g.vDW[0]}, v{t[2]}, v{t[1]}')
        for i in range(1, 4):
            P(f'v_add_u32 v{g.vDW[i]}, {8192*i}, v{g.vDW[0]}')
        return t[0], t[1]

    def addr_dma_o(self, P):
        g, t = self, self.tmp
        P(f'v_bfe_u32 v{t[1]}, v0, 4, 1')
        P(f'v_lshlrev_b32 v{t[1]}, 2, v{t[1]}')
        P(f'v_and_b32 v{t[2]}, 7, v0')
        P(f'v_xor_b32 v{t[1]}, v{t[1]}, v{t[2]}')
        P(f'v_lshlrev_b32 v{t[1]}, 4, v{t[1]}')
        P(f'v_lshl_add_u32 v{t[1]}, s{sW}, 7, v{t[1]}')
        P(f'v_lshrrev_b32 v{t[0]}, 5, v0')
        P(f'v_bfe_u32 v{t[2]}, v0, 3, 2')
        P(f'v_lshl_add_u32 v{t[0]}, v{t[0]}, 3, v{t[2]}')
        P(f'v_mul_u32_u24 v{t[0]}, 384, v{t[0]}')
        P(f'v_add_u32 v{g.vDO[0]}, v{t[0]}, v{t[1]}')
        for i in range(1, 4):
            P(f'v_add_u32 v{g.vDO[i]}, {(16*(i >> 1) + 4*(i & 1))*384 - 1024*i}, v{g.vDO[0]}')

    def addr_p1(self, P, helper):
        g, t = self, self.tmp
        P(f's_mul_i32 s{sRB}, s{sW}, {RING}')
        P(f'v_lshlrev_b32 v{g.vL16}, 4, v0')
        P(f'v_lshrrev_b32 v{t[0]}, 3, v0')
        P(f'v_lshl_add_u32 v{t[0]}, s{sW}, 3, v{t[0]}')
        P(f'v_mul_u32_u24 v{t[0]}, 400, v{t[0]}')
        P(f'v_and_b32 v{t[1]}, 7, v0')
        P(f'v_lshlrev_b32 v{t[1]}, 4, v{t[1]}')
        P(f'v_add_u32 v{t[0]}, {HIMG}, v{t[0]}')
        P(f'v_add_u32 v{g.vHW}, v{t[0]}, v{t[1]}')
        if helper:
            return
        self.addr_dma_o(P)
        P(f'v_and_b32 v{t[0]}, 31, v0')
        P(f'v_lshrrev_b32 v{t[1]}, 5, v0')
        P(f'v_mul_u32_u24 v{t[2]}, 400, v{t[0]}')
        P(f'v_add_u32 v{t[2]}, {HIMG}, v{t[2]}')
        P(f'v_lshl_add_u32 v{g.vHR}, v{t[1]}, 4, v{t[2]}')
        P(f'v_lshl_add_u32 v{t[2]}, v{t[1]}, 3, v{t[2]}')
        P(f'v_lshl_add_u32 v{g.vXR}, s{sW}, 7, v{t[2]}')
        P(f'v_lshlrev_b32 v{t[2]}, 4, v{t[0]}')
        P(f'v_add_u32 v{g.vSTR}, {STIMG}, v{t[2]}')
        P(f'v_lshl_add_u32 v{t[2]}, v{t[1]}, 3, v{g.vSTR}')
        P(f'v_lshl_add_u32 v{g.vSTW}, s{sW}, 9, v{t[2]}')
        P(f'v_bfe_u32 v{t[2]}, v0, 2, 2')
        P(f'v_lshlrev_b32 v{t[3]}, 10, v{t[1]}')
        P(f'v_lshl_add_u32 v{t[3]}, v{t[2]}, 7, v{t[3]}')
        P(f'v_bfe_u32 v{t[4]}, v0, 3, 1')
        P(f'v_lshl_add_u32 v{t[3]}, v{t[4]}, 6, v{t[3]}')
        P(f'v_bfe_u32 v{t[4]}, v0, 4, 1')
        P(f'v_lshl_add_u32 v{t[3]}, v{t[4]}, 5, v{t[3]}')
        P(f'v_and_b32 v{t[4]}, 3, v0')
        P(f'v_lshl_add_u32 v{t[3]}, v{t[4]}, 3, v{t[3]}')
        P(f'v_xor_b32 v{t[5]}, 64, v{t[3]}')
        P(f'v_add_u32 v{g.vWR[0]}, s{sRB}, v{t[3]}')
        P(f'v_add_u32 v{g.vWR[1]}, s{sRB}, v{t[5]}')
        P(f's_lshl_b32 s28, s{sW}, 10')
        P(f's_add_u32 s28, s28, {SIMG}')
        P(f'v_add_u32 v{g.vSW}, s28, v{g.vL16}')
        P(f's_lshl_b32 s28, s{sW}, 12')
        P(f's_add_u32 s28, s28, {OIMG}')
        P(f'v_add_u32 v{g.vOW1}, s28, v{g.vL16}')
        P(f'v_and_b32 v{t[2]}, 1, v0')
        P(f'v_lshlrev_b32 v{t[2]}, 4, v{t[2]}')
        P(f'v_mov_b32 v{t[3]}, 0xffff')
        P(f'v_lshlrev_b32 v{t[3]}, v{t[2]}, v{t[3]}')
        P('s_mov_b32 s38, 0x22222222\ns_mov_b32 s39, 0x22222222\ns_mov_b32 s40, 0x44444444\ns_mov_b32 s41, 0x44444444')
        P('s_mov_b32 s42, 0x88888888\ns_mov_b32 s43, 0x88888888')
        P('s_mov_b32 s30, 0x33333333\ns_mov_b32 s31, 0x33333333')
        P(f'v_cndmask_b32 v{g.vM0}, 0, v{t[3]}, s[30:31]')
        P(f'v_cndmask_b32 v{g.vM1}, v{t[3]}, 0, s[30:31]')
        P(f's_lshr_b32 s28, s{sWG}, 3')
        P('s_mul_i32 s28, s28, 12288')
        P(f's_lshl_b32 s30, s{sW}, 12')
        P('s_add_u32 s28, s28, s30')
        P(f's_and_b32 s30, s{sWG}, 7')
        P('s_lshl_b32 s31, s30, 7')
        P('s_add_u32 s28, s28, s31')
        P('s_bfe_u32 s30, s30, 0x10001')
        P(f'v_xor_b32 v{t[2]}, s30, v{t[1]}')
        P(f'v_lshlrev_b32 v{t[2]}, 6, v{t[2]}')
        P(f'v_lshl_add_u32 v{t[2]}, v{t[4]}, 4, v{t[2]}')
        P(f'v_lshrrev_b32 v{t[3]}, 2, v{t[0]}')
        P(f'v_mul_u32_u24 v{t[5]}, {FS}, v{t[3]}')
        P(f'v_add3_u32 v{t[2]}, v{t[2]}, v{t[5]}, s28')
        P(f'v_cmp_gt_u32 vcc, 7, v{t[3]}')
        P(f'v_mov_b32 v{t[5]}, {WS_OOB}')
        P(f'v_cndmask_b32 v{g.vST[0]}, v{t[5]}, v{t[2]}, vcc')
        P(f'v_xor_b32 v{g.vST[1]}, 128, v{g.vST[0]}')
        P(f's_mov_b32 s{sX1}, {WS_X1}')

    def addr_flags(self, P):
        g, t = self, self.tmp
        P(f's_lshr_b32 s28, s{sWG}, 3')
        P('s_lshl_b32 s28, s28, 7')
        P(f's_and_b32 s30, s{sWG}, 7')
        P('s_lshl_b32 s30, s30, 2')
        P('s_add_u32 s28, s28, s30')
        P(f's_add_u32 s28, s28, {WS_FLG}')
        P(f'v_lshl_add_u32 v{g.vFA}, v0, 12, s28')

    def addr_p2(self, P):
        g, t = self, self.tmp
        P(f's_mul_i32 s{sRB}, s{sW}, {RING}')
        P(f'v_lshlrev_b32 v{g.vL16}, 4, v0')
        P('s_mov_b32 s44, 0\ns_mov_b32 s45, -1')
        P(f's_and_b32 s30, s{sWG}, 7')
        P(f's_lshr_b32 s31, s{sWG}, 3')
        P(f's_mul_i32 s32, s30, {FS}')
        P(f's_add_u32 s{sB22}, s32, {22*12288}')

        def blk(dst, add_s, add_i):
            P(f's_add_u32 s33, s31, {add_i}')
            if add_s:
                P(f's_add_u32 s33, s33, s{add_s}')
            P('s_sub_u32 s34, s33, 23')
            P('s_min_u32 s33, s33, s34')
            P('s_mul_i32 s33, s33, 12288')
            P(f's_add_u32 s{dst}, s33, s32')
        for i in range(6):
            blk(sOff[i], sW, 4 * i)
        for w in range(4):
            blk(sCo[w], None, w)
            P(f's_add_u32 s33, s{sW}, {w}')
            P('s_and_b32 s33, s33, 3')
            P(f's_mul_i32 s{sRot[w]}, s33, 3072')
        P(f's_mov_b32 s{sTile}, s{sCo[0]}')
        P(f's_mul_i32 s{sAB}, s{sW}, 18432')
        P(f's_cmp_eq_u32 s{sW}, 3')
        P(f's_cselect_b32 s33, {WS_OOB}, 0')
        P(f'v_add_u32 v{g.vL16d}, s33, v{g.vL16}')
        if not self.two:
            P(f'v_lshrrev_b32 v{t[0]}, 3, v0')
            P(f'v_lshlrev_b32 v{t[1]}, 2, v{t[0]}')
            P(f'v_add_u32 v{t[1]}, s{sW}, v{t[1]}')
            P(f'v_cmp_gt_u32 vcc, 6, v{t[0]}')
            P(f'v_cndmask_b32 v{t[1]}, 0, v{t[1]}, vcc')
            P(f'v_add_u32 v{t[1]}, s31, v{t[1]}')
            P(f'v_subrev_u32 v{t[2]}, 23, v{t[1]}')
            P(f'v_min_u32 v{t[1]}, v{t[1]}, v{t[2]}')
            P(f'v_and_b32 v{t[2]}, 7, v0')
            P(f'v_lshlrev_b32 v{t[2]}, 2, v{t[2]}')
            P(f'v_lshl_add_u32 v{t[1]}, v{t[1]}, 7, v{t[2]}')
            P('s_lshl_b32 s33, s30, 12')
            P(f's_add_u32 s33, s33, {WS_FLG}')
            P(f'v_add_u32 v{g.vPA}, s33, v{t[1]}')
        P(f's_and_b32 s33, s{sW}, 1')
        h, key = t[0], t[1]
        P(f'v_lshrrev_b32 v{h}, 5, v0')
        P(f'v_and_b32 v{key}, 31, v0')
        P(f'v_lshrrev_b32 v{t[2]}, 2, v{key}')
        P(f'v_xor_b32 v{t[2]}, s33, v{t[2]}')
        P(f'v_lshlrev_b32 v{t[2]}, 7, v{t[2]}')
        P(f'v_bfe_u32 v{t[3]}, v0, 3, 1')
        P(f'v_xor_b32 v{t[3]}, v{t[3]}, v{h}')
        P(f'v_lshl_add_u32 v{t[2]}, v{t[3]}, 6, v{t[2]}')
        P(f'v_and_b32 v{t[4]}, 3, v0')
        P(f'v_lshl_add_u32 v{t[2]}, v{t[4]}, 4, v{t[2]}')
        P(f'v_xor_b32 v{t[3]}, 128, v{t[2]}')
        P(f'v_add_u32 v{g.vKR[0]}, s{sRB}, v{t[2]}')
        P(f'v_add_u32 v{g.vKR[1]}, s{sRB}, v{t[3]}')
        P(f'v_bfe_u32 v{t[2]}, v0, 4, 1')
        P(f'v_xor_b32 v{t[3]}, v{t[2]}, v{h}')
        P(f'v_xor_b32 v{t[3]}, s33, v{t[3]}')
        P(f'v_lshlrev_b32 v{t[3]}, 7, v{t[3]}')
        P(f'v_lshl_add_u32 v{t[3]}, v{t[2]}, 10, v{t[3]}')
        P(f'v_bfe_u32 v{t[5]}, v0, 1, 1')
        P(f'v_lshl_add_u32 v{t[3]}, v{t[5]}, 6, v{t[3]}')
        P(f'v_bfe_u32 v{t[5]}, v0, 2, 2')
        P(f'v_lshl_add_u32 v{t[3]}, v{t[5]}, 4, v{t[3]}')
        P(f'v_and_b32 v{t[6]}, 1, v0')
        P(f'v_lshl_add_u32 v{t[3]}, v{t[6]}, 3, v{t[3]}')
        P(f'v_xor_b32 v{t[6]}, 0x140, v{t[3]}')
        P(f'v_add_u32 v{g.vVR[0]}, s{sRB}, v{t[3]}')
        P(f'v_add_u32 v{g.vVR[1]}, s{sRB}, v{t[6]}')
        for k in range(4):
            P(f's_add_u32 s34, s{sRot[k]}, {QIMG}')
            P(f'v_add_u32 v{g.vQR[k]}, s34, v{g.vL16}')
        gray = t[7]
        P(f'v_lshrrev_b32 v{gray}, 1, v{t[5]}')
        P(f'v_xor_b32 v{t[8]}, v{gray}, v{t[2]}')
        P(f'v_xor_b32 v{gray}, v{gray}, v{t[5]}')
        P(f'v_xor_b32 v{t[9]}, v{gray}, v{h}')
        P(f'v_lshlrev_b32 v{t[9]}, 7, v{t[9]}')
        P(f'v_lshl_add_u32 v{t[9]}, v{h}, 10, v{t[9]}')
        P(f'v_lshl_add_u32 v{t[9]}, v{t[8]}, 6, v{t[9]}')
        P(f'v_lshl_add_u32 v{g.vBR}, v{t[4]}, 4, v{t[9]}')
        P(f'v_lshl_add_u32 v{t[8]}, v{gray}, 2, v{t[4]}')
        P(f's_mul_i32 s34, s{sW}, 3072')
        P(f's_add_u32 s34, s34, {QIMG}')
        P(f'v_lshl_add_u32 v{t[8]}, v{t[8]}, 4, s34')
        P(f'v_lshrrev_b32 v{t[9]}, 4, v0')
        P(f'v_lshl_add_u32 v{g.vQW[0]}, v{t[9]}, 9, v{t[8]}')
        P(f'v_lshl_add_u32 v{t[8]}, v{h}, 9, v{t[8]}')
        P(f'v_lshl_add_u32 v{t[8]}, v{t[2]}, 3, v{t[8]}')
        P(f'v_add_u32 v{g.vQW[1]}, 2048, v{t[8]}')
        P(f'v_add_u32 v{g.vOW2}, s34, v{g.vL16}')
        P(f'v_lshlrev_b32 v{t[8]}, 5, v{key}')
        P(f'v_add_u32 v{g.vMLR}, {MLIMG}, v{t[8]}')
        P(f'v_lshl_add_u32 v{g.vMLW}, s{sW}, 3, v{g.vMLR}')
        P(f'v_add_u32 v{g.vPW}, s{sRB}, v{g.vL16}')
        for d in range(1, 4):
            P(f's_add_u32 s34, s{sW}, {4-d}')
            P('s_and_b32 s34, s34, 3')
            P(f's_mul_i32 s34, s34, {RING}')
            P(f's_add_u32 s34, s34, {(d-1)*3072}')
            P(f'v_add_u32 v{g.vPR[d-1]}, s34, v{g.vL16}')
        tok = t[8]
        P(f'v_and_b32 v{tok}, 15, v0')
        P(f'v_lshlrev_b32 v{t[10]}, 4, v{tok}')
        P(f'v_lshl_add_u32 v{t[10]}, v{t[9]}, 9, v{t[10]}')
        P(f'v_add_u32 v{g.vFR}, {QIMG}, v{t[10]}')
        P(f's_mul_i32 s34, s{sW}, 3072')
        P(f's_add_u32 s34, s34, s{sTile}')
        P(f's_add_u32 s34, s34, {WS_X1}')
        P(f'v_xor_b32 v{t[3]}, s33, v{h}')
        P(f'v_xor_b32 v{t[3]}, v{t[3]}, v{t[5]}')
        P(f'v_lshlrev_b32 v{t[3]}, 7, v{t[3]}')
        P(f'v_lshl_add_u32 v{t[3]}, v{h}, 10, v{t[3]}')
        P(f'v_bfe_u32 v{t[6]}, v0, 3, 1')
        P(f'v_xor_b32 v{t[10]}, v{t[6]}, v{t[2]}')
        P(f'v_lshl_add_u32 v{t[3]}, v{t[10]}, 6, v{t[3]}')
        P(f'v_lshl_add_u32 v{t[3]}, v{t[4]}, 4, v{t[3]}')
        P(f'v_add_u32 v{g.vX1A[0]}, s34, v{t[3]}')
        P(f'v_xor_b32 v{t[3]}, s33, v{t[5]}')
        P(f'v_lshl_add_u32 v{t[3]}, v{t[2]}, 2, v{t[3]}')
        P(f'v_lshlrev_b32 v{t[3]}, 7, v{t[3]}')
        P(f'v_xor_b32 v{t[10]}, v{t[6]}, v{h}')
        P(f'v_lshl_add_u32 v{t[3]}, v{t[10]}, 6, v{t[3]}')
        P(f'v_lshl_add_u32 v{t[3]}, v{t[4]}, 4, v{t[3]}')
        P('s_add_u32 s34, s34, 2048')
        P(f'v_add_u32 v{g.vX1A[1]}, s34, v{t[3]}')
        P(f's_mul_i32 s34, s30, {FRAME_X}')
        P(f's_mul_i32 s35, s{sW}, 96')
        P('s_add_u32 s34, s34, s35')
        P('s_lshl_b32 s35, s31, 5')
        P('s_movk_i32 s36, 729')
        P(f'v_mov_b32 v{t[10]}, {X_OOB}')
        for k in range(3):
            if k < 2:
                P(f'v_add_u32 v{t[3]}, s35, v{tok}')
                if k == 1:
                    P(f'v_add_u32 v{t[3]}, 16, v{t[3]}')
                P(f'v_lshlrev_b32 v{t[6]}, 4, v{t[9]}')
            else:
                P(f'v_lshl_add_u32 v{t[3]}, v{t[2]}, 4, v{tok}')
                P(f'v_add_u32 v{t[3]}, s35, v{t[3]}')
                P(f'v_lshlrev_b32 v{t[6]}, 4, v{h}')
                P(f'v_add_u32 v{t[6]}, 64, v{t[6]}')
            P(f'v_cmp_gt_u32 vcc, s36, v{t[3]}')
            P(f'v_mul_u32_u24 v{t[3]}, 384, v{t[3]}')
            P(f'v_add3_u32 v{t[3]}, v{t[3]}, v{t[6]}, s34')
            P(f'v_cndmask_b32 v{g.vOA[k]}, v{t[10]}, v{t[3]}, vcc')

    def dma_group(self, P, G):
        g = self
        m, kk = divmod(G, 6)
        so = m * 384 + kk * 32 * 1152 if m < 3 else kk * 32 * 384
        out = []
        for i in range(4):
            def f(i=i):
                if i == 0:
                    assert G < 9 or (G - 9) in self.consumed, f'ring slot of group {G} still in use'
                    P(f's_mov_b32 s{sSO}, {so}')
                    P(f's_add_u32 m0, s{sRB}, {(G % 9) * 4096}')
                va, rs = (g.vDW[i], rW) if m < 3 else (g.vDO[i], rWO)
                P(f'buffer_load_dwordx4 v{va}, {rs}, s{sSO} offen offset:{1024*i} lds', tag=('w', G, i >> 1))
            out.append(f)
        return out

    def ln1_ops(self):
        g, t = self, self.tmp
        xf, xr, hp = g.xf, g.xraw, g.hpk
        ops = []
        for i in range(12):
            ops.append(f'v_lshlrev_b32 v{xf+2*i}, 16, v{xr+i}')
            ops.append(f'v_and_b32 v{xf+2*i+1}, 0xffff0000, v{xr+i}')
        s, q = g.sx, g.sx + 2
        ops.append(f'v_pk_add_f32 {vr(s,2)}, {vr(xf,2)}, {vr(xf+2,2)}')
        ops.append(f'v_pk_mul_f32 {vr(q,2)}, {vr(xf,2)}, {vr(xf,2)}')
        ops.append(f'v_pk_fma_f32 {vr(q,2)}, {vr(xf+2,2)}, {vr(xf+2,2)}, {vr(q,2)}')
        for i in range(2, 12):
            ops.append(f'v_pk_add_f32 {vr(s,2)}, {vr(s,2)}, {vr(xf+2*i,2)}')
            ops.append(f'v_pk_fma_f32 {vr(q,2)}, {vr(xf+2*i,2)}, {vr(xf+2*i,2)}, {vr(q,2)}')
        for i in range(3):
            ops.append(f'ds_write_b128 v{g.vHW}, {vr(xr+4*i,4)} offset:{XIMG-HIMG+128*i}')
        ops.append(f'v_add_f32 v{s}, v{s}, v{s+1}')
        ops.append(f'v_add_f32 v{q}, v{q}, v{q+1}')
        for ctl in ('quad_perm:[1,0,3,2]', 'quad_perm:[2,3,0,1]', 'row_half_mirror'):
            ops.append(f'v_add_f32_dpp v{s}, v{s}, v{s} {ctl} row_mask:0xf bank_mask:0xf')
            ops.append(f'v_add_f32_dpp v{q}, v{q}, v{q} {ctl} row_mask:0xf bank_mask:0xf')
        ops += self.ln_finish(s, q)
        for i in range(12):
            ops.append(f'v_pk_fma_f32 {vr(xf+2*i,2)}, {vr(xf+2*i,2)}, {vr(s,2)}, {vr(q,2)} op_sel_hi:[1,0,0]')
            if i:
                ops.append(f'v_cvt_pk_bf16_f32 v{hp+i-1}, v{xf+2*i-2}, v{xf+2*i-1}')
            if i in (5, 9):
                k = (i - 5) // 4
                ops.append(f'ds_write_b128 v{g.vHW}, {vr(hp+4*k,4)} offset:{128*k}')
        ops.append(f'v_cvt_pk_bf16_f32 v{hp+11}, v{xf+22}, v{xf+23}')
        ops.append(f'ds_write_b128 v{g.vHW}, {vr(hp+8,4)} offset:256')
        return ops

    def ln_finish(self, s, q):
        return [f'v_mul_f32 v{s}, {hx(f2u(1/192))}, v{s}',
                f'v_mul_f32 v{s+1}, v{s}, v{s}',
                f'v_mul_f32 v{q}, {hx(f2u(1/192))}, v{q}',
                f'v_sub_f32 v{q}, v{q}, v{s+1}',
                f'v_max_f32 v{q}, 0, v{q}',
                f'v_add_f32 v{q}, {hx(f2u(1e-5))}, v{q}',
                f'v_rsq_f32 v{q+1}, v{q}',
                f'v_mul_f32 v{q}, v{s}, v{q+1}',
                f'v_mov_b32 v{s}, v{q+1}',
                f'v_sub_f32 v{q}, 0, v{q}']

    def w_reads(self, P, n):
        g = self
        m, r = divmod(n, 24)
        s, ct = divmod(r, 2)
        G, sl = 6 * m + s // 2, s & 1
        P.need_vm(('w', G, sl), 2)
        a = g.aF + 4 * (n % 8)
        off = (G % 9) * 4096 + sl * 2048
        P(f'ds_read_b64_tr_b16 {ar(a,2)}, v{g.vWR[ct]} offset:{off}')
        P(f'ds_read_b64_tr_b16 {ar(a+2,2)}, v{g.vWR[ct]} offset:{off+512}')

    def gemm1(self, P, m, acc, fill, cinit0=True, pre=0, pattern=None):
        g = self
        LA = self.o['la1']
        for k in range(pre, LA):
            self.w_reads(P, 24 * m + k)
        lead = []
        for r in range(24):
            def f(r=r):
                n = 24 * m + r
                s, ct = divmod(r, 2)
                w, h = ar(g.aF + 4 * (n % 8), 4), ar(g.aH + 4 * s, 4)
                d = vr(acc + 16 * ct, 16)
                c = '0' if (s == 0 and cinit0) else d
                a, b = (h, w) if m == 2 else (w, h)
                P(f'v_mfma_f32_32x32x16_bf16 {d}, {a}, {b}, {c}')
                if r % 4 == 3:
                    self.consumed.add(6 * m + r // 4)
                if r + LA < 24:
                    self.w_reads(P, n + LA)
            lead.append(f)
        interleave(P, lead, fill, pattern)

    def pack16(self, dst, src):
        return [f'v_cvt_pk_bf16_f32 v{dst+i}, v{src+2*i}, v{src+2*i+1}' for i in range(16)]

    def phase1_compute(self, P):
        g, t = self, self.tmp
        self.consumed = set()
        D = lambda G: self.dma_group(P, G)
        self.addr_dma(P)
        P(f's_lshr_b32 s28, s{sWG}, 3')
        P('s_mul_i32 s28, s28, 3')
        P(f's_add_u32 s28, s28, s{sW}')
        P('s_mul_i32 s28, s28, 3328')
        P(f'v_min_u32 v{t[10]}, 25, v0')
        P(f'v_lshl_add_u32 v{t[10]}, v{t[10]}, 7, s28')
        P(f's_mul_i32 s{sRB}, s{sW}, {RING}')
        P.wait_all()
        self.stamp(P, 'karg')
        for i in range(3):
            P(f'buffer_load_dwordx4 {vr(g.xraw+4*i,4)}, v{g.vXA}, {rX}, 0 offen offset:{128*i}')
        P(f'buffer_load_dword v{g.dum[1]}, v{t[10]}, {rW}, 0 offen')
        for f in D(0):
            f()
        self.addr_p1(P, False)
        if not self.two:
            self.addr_p2(P)
        for f in D(1):
            f()
        ops = self.ln1_ops()
        P(ops[0])
        self.stamp(P, 'xin')
        dm = D(2) + D(3) + D(4)
        k = 0
        for n, op in enumerate(ops[1:]):
            P(op)
            if n % 8 == 7 and k < len(dm):
                dm[k]()
                k += 1
        while k < len(dm):
            dm[k]()
            k += 1
        P.barrier()
        self.stamp(P, 'bH')
        for s in range(12):
            P(f'ds_read_b128 {ar(g.aH+4*s,4)}, v{g.vHR} offset:{32*s}')
            if s == 3:
                for k in range(2):
                    self.w_reads(P, k)
        self.gemm1(P, 0, g.accA, D(5) + D(6) + D(7) + D(8) + D(9), pre=2)
        self.stamp(P, 'Q')
        xr = []
        for u in range(8):
            xr.append(f'ds_read_b64 {vr(g.vS+2*u,2)}, v{g.vXR} offset:{XIMG-HIMG+16*u}')
        un = []
        for u in range(16):
            un.append(f'v_lshlrev_b32 v{g.accY+2*u}, 16, v{g.vS+u}')
            un.append(f'v_and_b32 v{g.accY+2*u+1}, 0xffff0000, v{g.vS+u}')
        dm = D(10) + D(11) + D(12) + D(13) + D(14)
        va = xr + self.pack16(g.pkQ, g.accA) + un
        fill = []
        for k in range(len(dm)):
            fill.append(dm[k])
            fill += va[len(va) * k // len(dm): len(va) * (k + 1) // len(dm)]
        self.gemm1(P, 1, g.accB, fill)
        self.stamp(P, 'K')
        pk = self.pack16(g.pkK, g.accB)
        dm = D(15)
        for f in dm:
            f()
        for q in range(4):
            for op in pk[4*q:4*q+4]:
                P(op)
            P(f'v_mfma_f32_32x32x16_bf16 {vr(g.vS,16)}, {vr(g.pkK+4*q,4)}, {vr(g.pkQ+4*q,4)}, ' + ('0' if q == 0 else vr(g.vS, 16)))
        for k in range(self.o['la1']):
            self.w_reads(P, 48 + k)
        sx = g.sx
        for q in range(4):
            P(f'v_cndmask_b32 v{sx+q}, v{g.vS+4*q}, v{g.vS+4*q+1}, {sM1}')
        for q in range(4):
            P(f'v_cndmask_b32 v{sx+q}, v{sx+q}, v{g.vS+4*q+2}, {sM2}')
        for q in range(4):
            P(f'v_cndmask_b32 v{sx+q}, v{sx+q}, v{g.vS+4*q+3}, {sM3}')
        P(f'ds_write_b128 v{g.vSW}, {vr(sx,4)}')
        P.barrier()
        self.stamp(P, 'bS')
        P(f'v_add_u32 v{t[0]}, {SIMG}, v{g.vL16}')
        for k in range(3):
            P(f'ds_read_b128 {vr(g.vS+4*k,4)}, v{t[0]} offset:{1024*k}')
        sm = []
        S = g.vS
        for q in range(2):
            sm.append(f'v_pk_add_f32 {vr(S+2*q,2)}, {vr(S+2*q,2)}, {vr(S+4+2*q,2)}')
        for q in range(2):
            sm.append(f'v_pk_add_f32 {vr(S+2*q,2)}, {vr(S+2*q,2)}, {vr(S+8+2*q,2)}')
        sm.append(f'v_mov_b32 v{t[1]}, 0xff800000')
        sm.append('s_mov_b32 s44, 0\ns_mov_b32 s45, -1')
        sm.append(f'v_cndmask_b32 v{S+3}, v{S+3}, v{t[1]}, {sHI}')
        sm.append(f'v_max3_f32 v{t[1]}, v{S}, v{S+1}, v{S+2}')
        sm.append(f'v_max_f32 v{t[1]}, v{t[1]}, v{S+3}')
        sm.append(f'v_mov_b32 v{t[2]}, v{t[1]}')
        sm.append(f's_mov_b32 s28, {hx(f2u(SCALE_L2E))}')
        sm.append(f'v_permlane32_swap_b32 v{t[1]}, v{t[2]}')
        sm.append(f'v_max_f32 v{t[1]}, v{t[1]}, v{t[2]}')
        sm.append(f'v_mul_f32 v{t[1]}, s28, v{t[1]}')
        for q in range(4):
            sm.append(f'v_fma_f32 v{S+q}, v{S+q}, s28, -v{t[1]}')
        for q in range(4):
            sm.append(f'v_exp_f32 v{S+q}, v{S+q}')
        sm.append(f'v_add_f32 v{t[1]}, v{S}, v{S+1}')
        sm.append(f'v_add_f32 v{t[2]}, v{S+2}, v{S+3}')
        sm.append(f'v_add_f32 v{t[1]}, v{t[1]}, v{t[2]}')
        sm.append(f'v_mov_b32 v{t[2]}, v{t[1]}')
        sm.append(f'v_permlane32_swap_b32 v{t[1]}, v{t[2]}')
        sm.append(f'v_add_f32 v{t[1]}, v{t[1]}, v{t[2]}')
        sm.append(f'v_rcp_f32 v{t[1]}, v{t[1]}')
        for q in range(4):
            sm.append(f'v_mul_f32 v{S+q}, v{S+q}, v{t[1]}')
        for q in range(4):
            sm.append(f'v_cvt_pk_bf16_f32 v{S+q}, v{S+q}, v{S+q}')
        for q in range(4):
            sm.append(f'v_and_b32 v{g.vP1+2*q}, v{S+q}, v{g.vM0}')
            sm.append(f'v_and_b32 v{g.vP1+2*q+1}, v{S+q}, v{g.vM1}')
        dm = D(16) + D(17) + D(18) + D(19) + D(20)
        fill = []
        for k in range(len(dm)):
            fill.append(dm[k])
            if k >= 2:
                fill += sm[len(sm) * (k - 2) // (len(dm) - 2): len(sm) * (k - 1) // (len(dm) - 2)]
        self.gemm1(P, 2, g.accA, fill, pre=self.o['la1'])
        self.stamp(P, 'V')
        pk = self.pack16(g.pkV, g.accA)
        for f in D(21):
            f()
        for ct in range(2):
            for ks in range(2):
                q = 2 * ct + ks
                for op in pk[4*q:4*q+4]:
                    P(op)
                d = vr(g.accB + 16 * ct, 16)
                P(f'v_mfma_f32_32x32x16_bf16 {d}, {vr(g.pkV+4*q,4)}, {vr(g.vP1+4*ks,4)}, ' + ('0' if ks == 0 else d))
        for f in D(22):
            f()
        pk = self.pack16(g.pkO, g.accB)
        for q in range(4):
            for op in pk[4*q:4*q+4]:
                P(op)
            P(f'ds_write_b128 v{g.vOW1}, {vr(g.pkO+4*q,4)} offset:{1024*q}')
        P(f'v_add_u32 v{t[0]}, {OIMG}, v{g.vL16}')
        P.barrier()
        self.stamp(P, 'bO')
        for s in range(12):
            P(f'ds_read_b128 {ar(g.aH+4*s,4)}, v{t[0]} offset:{1024*s}')
            if s == 3:
                for k in range(2):
                    self.w_reads(P, 72 + k)
        self.gemm1(P, 3, g.accY, D(23), cinit0=False, pre=2, pattern=[1]*4 + [0]*20)
        self.stamp(P, 'Wo')
        Y = g.accY
        s, q = g.sx, g.sx + 2
        P(f'v_pk_add_f32 {vr(s,2)}, {vr(Y,2)}, {vr(Y+2,2)}')
        P(f'v_pk_mul_f32 {vr(q,2)}, {vr(Y,2)}, {vr(Y,2)}')
        P(f'v_pk_fma_f32 {vr(q,2)}, {vr(Y+2,2)}, {vr(Y+2,2)}, {vr(q,2)}')
        for i in range(2, 16):
            P(f'v_pk_add_f32 {vr(s,2)}, {vr(s,2)}, {vr(Y+2*i,2)}')
            P(f'v_pk_fma_f32 {vr(q,2)}, {vr(Y+2*i,2)}, {vr(Y+2*i,2)}, {vr(q,2)}')
        P(f'v_add_f32 v{s}, v{s}, v{s+1}')
        P(f'v_add_f32 v{s+1}, v{q}, v{q+1}')
        P(f'ds_write_b64 v{g.vSTW}, {vr(s,2)}')
        P.barrier()
        self.stamp(P, 'bST')
        st = g.vS
        for k in range(3):
            P(f'ds_read_b128 {vr(st+4*k,4)}, v{g.vSTR} offset:{512*k}')

        def store_img(pk, soff, tag):
            for qq in range(4):
                P(f'v_permlane32_swap_b32 v{pk+4*qq}, v{pk+4*qq+2}')
                P(f'v_permlane32_swap_b32 v{pk+4*qq+1}, v{pk+4*qq+3}')
                P(f'buffer_store_dwordx4 {vr(pk+4*qq,4)}, v{g.vST[qq & 1]}, {rWS}, {soff} offen offset:{1024*qq}{self.sc}', tag=tag)
        for op in self.pack16(g.pkQ, Y):
            P(op)
        store_img(g.pkQ, f's{sX1}', 'st')
        P(f'v_pk_add_f32 {vr(st,2)}, {vr(st,2)}, {vr(st+2,2)}')
        P(f'v_pk_add_f32 {vr(st+4,2)}, {vr(st+4,2)}, {vr(st+6,2)}')
        P(f'v_pk_add_f32 {vr(st+8,2)}, {vr(st+8,2)}, {vr(st+10,2)}')
        P(f'v_pk_add_f32 {vr(st,2)}, {vr(st,2)}, {vr(st+4,2)}')
        P(f'v_pk_add_f32 {vr(st,2)}, {vr(st,2)}, {vr(st+8,2)}')
        P(f'v_mov_b32 v{s}, v{st}')
        P(f'v_mov_b32 v{q}, v{st+1}')
        for op in self.ln_finish(s, q):
            P(op)
        for i in range(16):
            P(f'v_pk_fma_f32 {vr(Y+2*i,2)}, {vr(Y+2*i,2)}, {vr(s,2)}, {vr(q,2)} op_sel_hi:[1,0,0]')
        for op in self.pack16(g.pkK, Y):
            P(op)
        store_img(g.pkK, '0', 'st')
        self.stamp(P, 'stored')

    def load_ab(self, P, base, k):
        g = self
        if k % 4 == 0:
            P(f's_add_u32 s{sSO}, s{sAB}, {base + 1024 * k}')
        P(f'buffer_load_dwordx4 {ar(g.aAB+4*k,4)}, v{g.vL16}, {rWS}, s{sSO} offen offset:{1024*(k % 4)}{self.sc}', tag='ab')

    def phase1_helper(self, P):
        g, t = self, self.tmp
        P(f's_lshr_b32 s28, s{sWG}, 3')
        P('s_mul_i32 s28, s28, 3328')
        P(f'v_min_u32 v{t[10]}, 25, v0')
        P(f'v_lshl_add_u32 v{t[10]}, v{t[10]}, 7, s28')
        if not self.two:
            P(f'v_lshrrev_b32 v{t[0]}, 1, v0')
            P(f'v_lshlrev_b32 v{t[0]}, 7, v{t[0]}')
            P(f'v_and_b32 v{t[1]}, 1, v0')
            P(f'v_lshl_add_u32 v{t[0]}, v{t[1]}, 4, v{t[0]}')
            P(f'v_lshlrev_b32 v{t[1]}, 5, v0')
            P(f's_cmp_eq_u32 s{sWG}, 7')
            P('s_cselect_b64 vcc, -1, 0')
            P(f'v_cndmask_b32 v{t[0]}, v{t[0]}, v{t[1]}, vcc')
            P(f's_lshl_b32 s28, s{sWG}, 12')
            P(f's_add_u32 s28, s28, {WS_FLG}')
            P(f's_cmp_eq_u32 s{sWG}, 7')
            P(f's_cselect_b32 s28, {WS_ABF}, s28')
            P(f'v_add_u32 v{t[9]}, s28, v{t[0]}')
            for k in range(4):
                P(f'v_mov_b32 v{g.sx+k}, 0')
        P.wait_all()
        self.stamp(P, 'karg')
        if not self.two:
            P(f's_cmp_ge_u32 s{sWG}, 8')
            P('s_cbranch_scc1 L_noreset')
            P.raw(f'buffer_store_dwordx4 {vr(g.sx,4)}, v{t[9]}, {rWS}, 0 offen sc0 sc1', cond=True)
            P.label('L_noreset')
        for i in range(3):
            P(f'buffer_load_dwordx4 {vr(g.xraw+4*i,4)}, v{g.vXA}, {rX}, 0 offen offset:{128*i}')
        P(f'buffer_load_dword v{g.dum[1]}, v{t[10]}, {rWO}, 0 offen')
        self.addr_p1(P, True)
        if not self.two:
            self.addr_flags(P)
            self.addr_p2(P)
        ops = self.ln1_ops()
        P(ops[0])
        self.stamp(P, 'xin')
        if not self.two:
            P.force_wait('vmcnt(0)')
            P(f's_cmp_ge_u32 s{sWG}, 8')
            P('s_cbranch_scc1 L_nodone')
            P.raw(f's_lshl_b32 s28, s{sWG}, 2', cond=True)
            P.raw(f'v_mov_b32 v{t[0]}, 1', cond=True)
            P.raw(f'v_mov_b32 v{t[1]}, s28', cond=True)
            P.raw('s_mov_b64 exec, 1', cond=True)
            P.raw(f'buffer_store_dword v{t[0]}, v{t[1]}, {rDBG}, 0 offen sc0 sc1', cond=True)
            P.raw('s_mov_b64 exec, -1', cond=True)
            P.label('L_nodone')
        for op in ops[1:]:
            P(op)
        P.barrier()
        self.stamp(P, 'bH')
        if not self.two:
            P(f'v_lshlrev_b32 v{t[1]}, 2, v0')
            self.poll(P, t[1], rDBG, 8, 'L_pollD', sleep=2)
        P.barrier()
        P.barrier()
        if not self.two:
            P(f'v_lshlrev_b32 v{t[1]}, 5, v0')
            P(f'v_add_u32 v{t[1]}, {WS_ABF}, v{t[1]}')
            self.poll(P, t[1], rWS, NAB, 'L_pollAB', sleep=2)
        P.barrier()
        self.stamp(P, 'bST')

    def ab_path(self, P):
        g, t = self, self.tmp
        P('s_load_dwordx2 s[8:9], s[0:1], 24')
        P('s_load_dwordx2 s[12:13], s[0:1], 32')
        P('s_load_dwordx2 s[24:25], s[0:1], 48')
        P('s_load_dwordx2 s[16:17], s[0:1], 56')
        self.srd_consts(P, ['W', 'WO', 'WS', 'DBG'])
        self.wave_lane(P)
        P(f's_sub_u32 s28, s{sWG}, {NP1}')
        P('s_sub_u32 s29, s28, 18')
        P('s_min_u32 s29, s28, s29')
        P('s_lshl_b32 s29, s29, 2')
        P(f's_add_u32 s29, s29, s{sW}')
        P('s_mul_i32 s30, s29, 3641')
        P('s_lshr_b32 s30, s30, 16')
        P('s_mul_i32 s31, s30, 18')
        P('s_sub_u32 s31, s29, s31')
        P('s_mul_i32 s32, s31, 43')
        P('s_lshr_b32 s32, s32, 8')
        P('s_mul_i32 s33, s32, 6')
        P('s_sub_u32 s33, s31, s33')
        i16, qd, hi, lo = t[0], t[1], t[2], t[3]
        P(f'v_and_b32 v{i16}, 15, v0')
        P(f'v_lshrrev_b32 v{qd}, 4, v0')
        P(f'v_lshrrev_b32 v{hi}, 2, v{i16}')
        P(f'v_and_b32 v{lo}, 3, v0')
        P(f'v_lshlrev_b32 v{g.vL16}, 4, v0')
        A0 = g.accA
        B0 = g.accY
        D0 = g.pkQ
        P('s_cmp_ge_u32 s28, 18')
        P('s_cbranch_scc1 L_ab_B')
        Q = P.fork()
        P(f'v_lshl_add_u32 v{t[4]}, v{hi}, 3, v{lo}')
        P('s_lshl_b32 s34, s33, 5')
        P(f'v_add_u32 v{t[4]}, s34, v{t[4]}')
        P(f'v_mul_u32_u24 v{t[4]}, 1152, v{t[4]}')
        P(f'v_lshl_add_u32 v{t[4]}, v{qd}, 4, v{t[4]}')
        P(f'v_add_u32 v{t[5]}, {4*1152}, v{t[4]}')
        P(f'v_lshl_add_u32 v{t[6]}, v{hi}, 3, v{lo}')
        P('s_lshl_b32 s34, s32, 2')
        P(f'v_add_u32 v{t[6]}, s34, v{t[6]}')
        P(f'v_add_u32 v{t[7]}, 32, v{i16}')
        P('s_cmp_eq_u32 s32, 2')
        P('s_cselect_b64 vcc, -1, 0')
        P(f'v_cndmask_b32 v{t[6]}, v{t[6]}, v{t[7]}, vcc')
        P('s_mul_i32 s34, s30, 48')
        P(f'v_add_u32 v{t[6]}, s34, v{t[6]}')
        P(f'v_mul_u32_u24 v{t[6]}, 1152, v{t[6]}')
        P(f'v_lshl_add_u32 v{t[6]}, v{qd}, 4, v{t[6]}')
        P(f's_mov_b32 s35, {hx(f2u(SCALE_L2E))}')
        P(f's_mov_b32 s36, {WS_AF}')
        P.wait_all()
        for k in range(6):
            P(f'buffer_load_dwordx4 {vr(A0+8*k,4)}, v{t[4]}, {rW}, 0 offen offset:{64*k}')
            P(f'buffer_load_dwordx4 {vr(A0+8*k+4,4)}, v{t[5]}, {rW}, 0 offen offset:{64*k}')
            P(f'buffer_load_dwordx4 {vr(B0+4*k,4)}, v{t[6]}, {rW}, 0 offen offset:{384+64*k}')
        P.wait_all()
        P('s_branch L_ab_mm')
        Q.label('L_ab_B')
        Q(f'v_lshrrev_b32 v{t[4]}, 1, v{hi}')
        Q(f'v_lshlrev_b32 v{t[4]}, 4, v{t[4]}')
        Q(f'v_and_b32 v{t[5]}, 1, v{hi}')
        Q(f'v_lshl_add_u32 v{t[4]}, v{t[5]}, 2, v{t[4]}')
        Q(f'v_add_u32 v{t[4]}, v{t[4]}, v{lo}')
        Q('s_lshl_b32 s34, s33, 5')
        Q(f'v_add_u32 v{t[4]}, s34, v{t[4]}')
        Q(f'v_mul_u32_u24 v{t[4]}, 1152, v{t[4]}')
        Q(f'v_lshl_add_u32 v{t[4]}, v{qd}, 4, v{t[4]}')
        Q(f'v_add_u32 v{t[5]}, {8*1152}, v{t[4]}')
        Q('s_cmp_eq_u32 s32, 2')
        Q('s_cselect_b32 s34, 32, 0')
        Q('s_mul_i32 s35, s30, 96')
        Q('s_add_u32 s34, s34, s35')
        Q(f'v_lshrrev_b32 v{t[6]}, 2, v0')
        Q(f'v_mul_u32_u24 v{t[6]}, 384, v{t[6]}')
        Q(f'v_lshl_add_u32 v{t[6]}, v{lo}, 4, v{t[6]}')
        Q(f'v_add_u32 v{t[6]}, s34, v{t[6]}')
        Q(f's_mul_i32 s{sRB}, s{sW}, 12288')
        Q(f'v_lshl_add_u32 v{t[7]}, v{qd}, 3, v{hi}')
        Q(f'v_lshlrev_b32 v{t[7]}, 6, v{t[7]}')
        Q('s_cmp_eq_u32 s32, 2')
        Q('s_cselect_b32 s34, 3, 4')
        Q('s_cselect_b32 s35, 32, s32')
        Q('s_cselect_b32 s36, 0, 3')
        Q('s_lshl_b32 s35, s35, s36')
        Q(f's_add_u32 s35, s35, s{sRB}')
        Q(f'v_lshlrev_b32 v{t[8]}, s34, v{lo}')
        Q(f'v_add3_u32 v{t[7]}, v{t[7]}, v{t[8]}, s35')
        Q('s_mov_b32 s35, 1.0')
        Q(f's_mov_b32 s36, {WS_BF}')
        Q.wait_all()
        for k in range(12):
            Q(f's_add_u32 m0, s{sRB}, {1024*k}')
            Q(f's_mov_b32 s{sSO}, {16*384*k}')
            Q(f'buffer_load_dwordx4 v{t[6]}, {rWO}, s{sSO} offen lds', tag='wo')
        for k in range(6):
            Q(f'buffer_load_dwordx4 {vr(A0+8*k,4)}, v{t[4]}, {rW}, 0 offen offset:{768+64*k}')
            Q(f'buffer_load_dwordx4 {vr(A0+8*k+4,4)}, v{t[5]}, {rW}, 0 offen offset:{768+64*k}')
        Q.need_vm('wo')
        for k in range(6):
            Q(f'ds_read_b64_tr_b16 {vr(B0+4*k,2)}, v{t[7]} offset:{2048*k}')
            Q(f'ds_read_b64_tr_b16 {vr(B0+4*k+2,2)}, v{t[7]} offset:{2048*k+256}')
        Q.wait_all()
        Q.label('L_ab_mm')
        for k in range(6):
            for a in range(2):
                d = vr(D0 + 4 * a, 4)
                Q(f'v_mfma_f32_16x16x32_bf16 {d}, {vr(A0+8*k+4*a,4)}, {vr(B0+4*k,4)}, ' + ('0' if k == 0 else d))
        Q('s_lshl_b32 s29, s29, 10')
        Q('s_add_u32 s36, s36, s29')
        for k in range(8):
            Q(f'v_mul_f32 v{D0+k}, s35, v{D0+k}')
        for k in range(4):
            Q(f'v_cvt_pk_bf16_f32 v{D0+8+k}, v{D0+2*k}, v{D0+2*k+1}')
        Q(f'buffer_store_dwordx4 {vr(D0+8,4)}, v{g.vL16}, {rWS}, s36 offen{self.sc}')
        if not self.two:
            Q(f'v_lshlrev_b32 v{t[1]}, 2, v0')
            self.poll(Q, t[1], rDBG, 8, 'L_pollD2', sleep=2)
            Q.barrier()
            Q(f's_cmp_lg_u32 s{sW}, 0')
            Q('s_cbranch_scc1 L_exit')
            Q('s_lshl_b32 s28, s28, 5')
            Q(f's_add_u32 s28, s28, {WS_ABF}')
            Q(f'v_mov_b32 v{t[0]}, 1')
            Q(f'v_mov_b32 v{t[1]}, s28')
            Q('s_mov_b64 exec, 1')
            Q(f'buffer_store_dword v{t[0]}, v{t[1]}, {rWS}, 0 offen sc0 sc1')
        Q('s_endpgm')
        return Q

    def kv_dma(self, P, i):
        g = self
        out = []
        for k in range(12):
            def f(k=k):
                gq, kk = divmod(k, 3)
                if kk == 0:
                    P(f's_add_u32 m0, s{sRB}, {(i % 3) * 12288 + gq * 3072}')
                    P(f's_add_u32 s{sSO}, s{sOff[i]}, s{sRot[gq]}')
                va = g.vL16d if i == 5 else g.vL16
                P(f'buffer_load_dwordx4 v{va}, {rWS}, s{sSO} offen offset:{1024*kk}{self.sc} lds', tag=('kv', i, gq))
            out.append(f)
        return out

    def phase2(self, P):
        g, t = self, self.tmp
        LA = self.o['la2']
        for w in range(4):
            P(f's_mul_i32 s28, s{sW}, 3072')
            P(f's_add_u32 m0, s28, {w * RING}')
            P(f's_add_u32 s{sSO}, s{sCo[w]}, s{sRot[w]}')
            for kk in range(3):
                P(f'buffer_load_dwordx4 v{g.vL16}, {rWS}, s{sSO} offen offset:{1024*kk}{self.sc} lds', tag=('co', min(w, 1)))
        if self.two:
            for k in range(18):
                self.load_ab(P, WS_AF, k)
        CI = g.CI
        for k in range(16):
            P(f'v_mov_b32 v{CI+k}, 0')
        for k in range(1, 4):
            P(f'v_mov_b32 v{CI+16+k}, 0xff800000')
        P(f'v_cndmask_b32 v{CI+16}, 0, v{CI+17}, {sHI}')
        P(f'v_mov_b32 v{g.la}, 0')
        P(f'v_mov_b32 v{g.lb}, 0')
        P.need_vm(('co', 0))
        P.barrier()
        self.stamp(P, 'qtile')
        for s in range(6):
            for tt in range(2):
                P(f'ds_read_b128 {ar(g.aH+8*s+4*tt,4)}, v{g.vBR} offset:{2048*s+512*tt}')
        lead = []
        for s in range(6):
            for ct in range(3):
                for tt in range(2):
                    d = vr(g.qacc + 4 * (3 * tt + ct), 4)
                    lead.append(f'v_mfma_f32_16x16x32_bf16 {d}, {ar(g.aAB+4*(6*ct+s),4)}, {ar(g.aH+8*s+4*tt,4)}, ' + ('0' if s == 0 else d))
        interleave(P, lead, self.kv_dma(P, 1))
        for tt in range(2):
            for k in range(6):
                P(f'v_cvt_pk_bf16_f32 v{g.qpk+8*tt+k}, v{g.qacc+12*tt+2*k}, v{g.qacc+12*tt+2*k+1}')
            P(f'ds_write_b128 v{g.vQW[0]}, {vr(g.qpk+8*tt,4)} offset:{256*tt}')
            P(f'ds_write_b64 v{g.vQW[1]}, {vr(g.qpk+8*tt+4,2)} offset:{256*tt}')
        P.need_vm(('co', 1))
        P.barrier()
        self.stamp(P, 'qdone')

        steps = [('qk', 0, k) for k in range(12)]
        for i in range(5):
            steps += [('qk', i + 1, k) for k in range(12)]
            steps += [('pv', i, k) for k in range(12)]
        steps += [('pv', 5, k) for k in (10, 11, 8, 9, 6, 7, 4, 5, 2, 3, 0, 1)]
        NS = len(steps)

        def reads(n):
            kind, i, k = steps[n]
            a = g.aF + 4 * (n % 8)
            base = (i % 3) * 12288
            if kind == 'qk':
                P.need_vm(('kv', i, k // 3), 3 if i else 0)
                P(f'ds_read_b128 {ar(a,4)}, v{g.vKR[k & 1]} offset:{base + 1024*k}')
            else:
                tau, ks = divmod(k, 2)
                for u in range(2):
                    P(f'ds_read_b64_tr_b16 {ar(a+2*u,2)}, v{g.vVR[u]} offset:{base + 2048*tau + 512*ks}')

        def mfma(n):
            kind, i, k = steps[n]
            a = ar(g.aF + 4 * (n % 8), 4)
            if kind == 'qk':
                d = vr(g.S[i & 1], 16)
                b = ar(g.aQ + 4 * k, 4)
                if k == 0:
                    P(f's_cmp_eq_u32 s{sOff[i]}, s{sB22}')
                    P(f'v_mfma_f32_32x32x16_bf16 {d}, {a}, {b}, {vr(CI,16)}')
                    P(f's_cbranch_scc0 L_nm{i}')
                    P.raw(f'v_mfma_f32_32x32x16_bf16 {d}, {a}, {b}, {vr(CI+4,16)}', cond=True)
                    P.label(f'L_nm{i}')
                else:
                    P(f'v_mfma_f32_32x32x16_bf16 {d}, {a}, {b}, {d}')
            else:
                tau, ks = divmod(k, 2)
                d = vr(g.O + 16 * tau, 16)
                c = '0' if (i == 0 and ks == 0) else d
                P(f'v_mfma_f32_32x32x16_bf16 {d}, {a}, {vr(g.P+4*ks,4)}, {c}')

        def run(n0, n1, fill, pattern=None):
            lead = []
            for n in range(n0, n1):
                def f(n=n):
                    mfma(n)
                    if n + LA < NS:
                        reads(n + LA)
                lead.append(f)
            interleave(P, lead, fill, pattern)

        def softmax(i):
            S = g.S[i & 1]
            ex, cv, ad = [], [], []
            for r in range(16):
                ex.append(f'v_exp_f32 v{S+r}, v{S+r}')
                ad.append(f'v_add_f32 v{g.la if r % 2 == 0 else g.lb}, v{g.la if r % 2 == 0 else g.lb}, v{S+r}')
            for r in range(8):
                cv.append(f'v_cvt_pk_bf16_f32 v{g.P+r}, v{S+2*r}, v{S+2*r+1}')
            return ex, cv, ad

        def maxchain(i):
            S = g.S[i & 1]
            ops = [f'v_max3_f32 v{g.bm}, v{S}, v{S+1}, v{S+2}']
            for r in range(3, 15, 2):
                ops.append(f'v_max3_f32 v{g.bm}, v{g.bm}, v{S+r}, v{S+r+1}')
            ops.append(f'v_max_f32 v{g.bm}, v{g.bm}, v{S+15}')
            return ops

        for k in range(12):
            P(f'ds_read_b128 {ar(g.aQ+4*k,4)}, v{g.vQR[k // 3]} offset:{1024*(k % 3)}')
            if k == 2:
                for n in range(LA):
                    reads(n)
        run(0, 12, self.kv_dma(P, 2))
        S0 = g.S[0]
        for op in maxchain(0):
            P(op)
        P(f'v_mov_b32 v{t[0]}, v{g.bm}')
        P(f'v_permlane32_swap_b32 v{g.bm}, v{t[0]}')
        P(f'v_max_f32 v{g.mref}, v{g.bm}, v{t[0]}')
        for k in range(20):
            P(f'v_sub_f32 v{CI+k}, v{CI+k}, v{g.mref}')
        for k in range(16):
            P(f'v_sub_f32 v{S0+k}, v{S0+k}, v{g.mref}')
        self.stamp(P, 'r0')
        n = 12
        carry = []
        for i in range(5):
            ex, cv, ad = softmax(i)
            fill = list(carry)
            carry = []
            sm = []
            for r in range(8):
                sm += [ex[2*r], ex[2*r+1]]
                if r:
                    sm.append(cv[r-1])
                    sm.append(ad[r-1])
            sm += [ad[7], cv[7]]
            mix = []
            for k, op in enumerate(sm):
                if fill and k % 6 == 0:
                    mix.append(fill.pop(0))
                mix.append(op)
            mix += fill
            if i == 4:
                P(f's_cmp_lg_u32 s{sW}, 3')
                P('s_cbranch_scc1 L_w3a')
                for k in range(20):
                    P.raw(f'v_mov_b32 v{CI+k}, 0xff800000', cond=True)
                P.label('L_w3a')
            run(n, n + 12, mix)
            n += 12
            mx = maxchain(i + 1)
            if i <= 2:
                dm = self.kv_dma(P, i + 3)
                slots = {4: dm[0:1], 5: dm[1:2], 6: dm[2:4], 7: dm[4:5], 8: dm[5:6], 10: dm[6:8], 11: dm[8:9]}
                carry = dm[9:12]
            else:
                ld = []
                for k in range(9 * (i - 3), 9 * (i - 3) + 9):
                    ld.append(lambda k=k: self.load_ab(P, WS_BF, k))
                if i == 4:
                    ld.append(lambda: P(f'buffer_load_dwordx4 {vr(g.x1r,4)}, v{g.vX1A[0]}, {rWS}, 0 offen{self.sc}'))
                    ld.append(lambda: P(f'buffer_load_dwordx4 {vr(g.x1r+4,4)}, v{g.vX1A[0]}, {rWS}, 0 offen offset:512{self.sc}'))
                    ld.append(lambda: P(f'buffer_load_dwordx4 {vr(g.x1r+8,4)}, v{g.vX1A[1]}, {rWS}, 0 offen{self.sc}'))
                slots = {k: ld[k:k+1] for k in range(12)}
            fill, pattern = [], []
            for k in range(12):
                items = list(slots.get(k, []))
                if k < 4:
                    items += ad[8 + 2*k: 10 + 2*k]
                elif k < 8:
                    items += mx[2*(k-4): 2*(k-4) + 2]
                elif k == 8:
                    items.append(f'v_cmp_lt_f32 vcc, {hx(f2u(THR))}, v{g.bm}')
                fill += items
                pattern.append(len(items))
            run(n, n + 12, fill, pattern)
            n += 12
            P(f's_cbranch_vccnz L_slow{i}')
            P.label(f'L_ok{i}')
            self.stamp(P, f'r{i+1}') if i in (1, 4) else None
        ex, cv, ad = softmax(5)
        for r in range(8):
            P(ex[2*r]); P(ex[2*r+1])
            if r:
                P(cv[r-1]); P(ad[2*r-2]); P(ad[2*r-1])
        P(ad[14]); P(cv[7]); P(ad[15])
        ml = g.ml
        P(f'v_add_f32 v{g.la}, v{g.la}, v{g.lb}')
        P(f'v_mov_b32 v{t[0]}, v{g.la}')
        run(n, n + 1, [])
        P(f'v_permlane32_swap_b32 v{g.la}, v{t[0]}')
        P(f'v_mov_b32 v{ml}, v{g.mref}')
        P(f'v_add_f32 v{ml+1}, v{g.la}, v{t[0]}')
        P(f'ds_write_b64 v{g.vMLW}, {vr(ml,2)}', tag='ml')
        run(n + 1, n + 2, [])
        P.need_lg('ml')
        P.raw('s_barrier')
        P(f'ds_read_b128 {vr(ml,4)}, v{g.vMLR}')
        P(f'ds_read_b128 {vr(ml+4,4)}, v{g.vMLR} offset:16')
        run(n + 2, n + 4, [])
        gf = g.gfac
        fac = [f'v_max3_f32 v{t[0]}, v{ml}, v{ml+2}, v{ml+4}', f'v_max_f32 v{t[0]}, v{t[0]}, v{ml+6}']
        fac += [f'v_sub_f32 v{ml+2*k}, v{ml+2*k}, v{t[0]}' for k in range(4)]
        fac += [f'v_sub_f32 v{gf}, v{g.mref}, v{t[0]}']
        fac += [f'v_exp_f32 v{ml+2*k}, v{ml+2*k}' for k in range(4)]
        fac += [f'v_exp_f32 v{gf}, v{gf}']
        fac += [f'v_mul_f32 v{t[1]}, v{ml}, v{ml+1}']
        fac += [f'v_fmac_f32 v{t[1]}, v{ml+2*k}, v{ml+2*k+1}' for k in range(1, 4)]
        fac += [f'v_rcp_f32 v{t[1]}, v{t[1]}', f'v_mul_f32 v{gf}, v{gf}, v{t[1]}']
        run(n + 4, n + 7, fac)
        O = g.O
        pk = g.S[0]
        sc_ops = []
        cnt = 0
        for pr in range(11, 2, -1):
            dst = pk + 4 * (cnt % 4)
            cnt += 1
            for k in range(4):
                sc_ops.append(f'v_fma_mixlo_f16 v{dst+k}, v{O+8*pr+2*k}, v{gf}, 0')
            for k in range(4):
                sc_ops.append(f'v_fma_mixhi_f16 v{dst+k}, v{O+8*pr+2*k+1}, v{gf}, 0')
            d, p = divmod(pr, 3)
            sc_ops.append(f'ds_write_b128 v{g.vPW}, {vr(dst,4)} offset:{(d-1)*3072 + p*1024}')
        run(n + 7, n + 12, sc_ops[:20])
        for op in sc_ops[20:]:
            P(op)
        for k in range(24):
            P(f'v_mul_f32 v{O+k}, v{O+k}, v{gf}')
        P.barrier()
        self.stamp(P, 'bP')
        R = O + 24
        for p in range(3):
            for d in range(3):
                P(f'ds_read_b128 {vr(R+12*p+4*d,4)}, v{g.vPR[d]} offset:{1024*p}')
        F, X = g.facc, g.x1r
        P(f'v_permlane16_swap_b32 v{X+8}, v{X+10}')
        P(f'v_permlane16_swap_b32 v{X+9}, v{X+11}')
        for tt in range(2):
            for ct in range(3):
                src = X + 4 * tt + 2 * ct if ct < 2 else X + 8 + 2 * tt
                for k in range(2):
                    P(f'v_lshlrev_b32 v{F+4*(3*tt+ct)+2*k}, 16, v{src+k}')
                    P(f'v_and_b32 v{F+4*(3*tt+ct)+2*k+1}, 0xffff0000, v{src+k}')
        opk = O + 64
        for p in range(3):
            b = R + 12 * p
            for k in range(4):
                P(f'v_pk_add_f16 v{b+k}, v{b+k}, v{b+4+k}')
            for k in range(4):
                P(f'v_pk_add_f16 v{b+k}, v{b+k}, v{b+8+k}')
            for k in range(4):
                P(f'v_fma_mix_f32 v{O+8*p+2*k}, v{b+k}, 1.0, v{O+8*p+2*k} op_sel_hi:[1,0,0]')
                P(f'v_fma_mix_f32 v{O+8*p+2*k+1}, v{b+k}, 1.0, v{O+8*p+2*k+1} op_sel:[1,0,0] op_sel_hi:[1,0,0]')
            for k in range(4):
                P(f'v_cvt_pk_bf16_f32 v{opk+4*p+k}, v{O+8*p+2*k}, v{O+8*p+2*k+1}')
            P(f'ds_write_b128 v{g.vOW2}, {vr(opk+4*p,4)} offset:{1024*p}')
        P.barrier()
        self.stamp(P, 'bF')
        for s in range(6):
            for tt in range(2):
                P(f'ds_read_b128 {ar(g.aH+8*s+4*tt,4)}, v{g.vFR} offset:{2048*s+256*tt}')
        for s in range(6):
            for tt in range(2):
                for ct in range(3):
                    d = vr(F + 4 * (3 * tt + ct), 4)
                    P(f'v_mfma_f32_16x16x32_bf16 {d}, {ar(g.aAB+4*(6*ct+s),4)}, {ar(g.aH+8*s+4*tt,4)}, {d}')
        for tt in range(2):
            for k in range(4):
                P(f'v_cvt_pk_bf16_f32 v{opk+4*tt+k}, v{F+12*tt+2*k}, v{F+12*tt+2*k+1}')
            for k in range(2):
                P(f'v_cvt_pk_bf16_f32 v{opk+8+2*tt+k}, v{F+12*tt+8+2*k}, v{F+12*tt+8+2*k+1}')
            P(f'buffer_store_dwordx4 {vr(opk+4*tt,4)}, v{g.vOA[tt]}, {rOUT}, 0 offen')
        P(f'v_permlane16_swap_b32 v{opk+8}, v{opk+10}')
        P(f'v_permlane16_swap_b32 v{opk+9}, v{opk+11}')
        P(f'buffer_store_dwordx4 {vr(opk+8,4)}, v{g.vOA[2]}, {rOUT}, 0 offen')
        self.stamp(P, 'end')

    def rescale_subs(self):
        g, t = self, self.tmp
        out = ''
        for i in range(5):
            out += f'L_slow{i}:\n    s_call_b64 {sRet}, L_rescale{(i + 1) & 1}\n    s_branch L_ok{i}\n'
        for b in range(2):
            P = Prog()
            P.label(f'L_rescale{b}')
            P.raw('s_nop 15')
            P(f'v_mov_b32 v{t[0]}, v{g.bm}')
            P(f'v_permlane32_swap_b32 v{g.bm}, v{t[0]}')
            P(f'v_max3_f32 v{t[0]}, v{g.bm}, v{t[0]}, 0')
            P(f'v_exp_f32 v{t[1]}, -v{t[0]}')
            P(f'v_add_f32 v{g.mref}, v{g.mref}, v{t[0]}')
            for k in range(16):
                P(f'v_sub_f32 v{g.S[b]+k}, v{g.S[b]+k}, v{t[0]}')
            for k in range(20):
                P(f'v_sub_f32 v{g.CI+k}, v{g.CI+k}, v{t[0]}')
            P(f'v_mul_f32 v{g.la}, v{g.la}, v{t[1]}')
            P(f'v_mul_f32 v{g.lb}, v{g.lb}, v{t[1]}')
            for k in range(96):
                P(f'v_mul_f32 v{g.O+k}, v{g.O+k}, v{t[1]}')
            P.raw('s_nop 1')
            P(f's_setpc_b64 {sRet}')
            out += P.text()
        return out

    def kd(self, name):
        return f'''.section .rodata,"a"
.p2align 6
.amdhsa_kernel {name}
  .amdhsa_next_free_vgpr 512
  .amdhsa_next_free_sgpr 102
  .amdhsa_accum_offset 256
  .amdhsa_group_segment_fixed_size 0
  .amdhsa_kernarg_size 64
  .amdhsa_user_sgpr_count 2
  .amdhsa_user_sgpr_kernarg_segment_ptr 1
  .amdhsa_system_sgpr_workgroup_id_x 1
  .amdhsa_float_denorm_mode_32 3
.end_amdhsa_kernel
.text
'''

    def head(self, name):
        return f'.globl {name}\n.p2align 8\n.type {name},@function\n{name}:\n'

    def build(self):
        g, t = self, self.tmp
        name1 = 'p1_kernel' if self.two else KNAME
        P = Prog()
        if self.diag:
            P(f's_memrealtime s[{sST0}:{sST0+1}]')
            self.stamp_names.append('rt')
            self.stamp(P, 't0')
        if self.o.get('amp'):
            P('s_memrealtime s[74:75]')
        P(f's_getpc_b64 {sPC}')
        P.label('L_code_pc')
        P(f's_cmp_ge_u32 s{sWG}, {NP1}')
        P('s_cbranch_scc1 L_ab')
        AB = P.fork()
        P('s_load_dwordx2 s[4:5], s[0:1], 0')
        P('s_load_dwordx2 s[8:9], s[0:1], 8')
        P('s_load_dwordx2 s[12:13], s[0:1], 16')
        P('s_load_dwordx2 s[16:17], s[0:1], 56')
        P('s_load_dwordx2 s[20:21], s[0:1], 40')
        P('s_load_dwordx2 s[24:25], s[0:1], 48')
        self.wave_lane(P)
        self.srd_consts(P, ['X', 'W', 'WO', 'WS', 'OUT', 'DBG'])
        P('s_movk_i32 s29, 729')
        self.addr_x(P)
        P(f's_cmp_eq_u32 s{sW}, 3')
        P('s_cbranch_scc1 L_helper')
        H = P.fork()
        self.phase1_compute(P)
        H.label('L_helper')
        self.code_prefetch(H, 'L_code', 'L_codeend')
        self.phase1_helper(H)
        if self.two:
            self.dump_stamps(P)
            P('s_endpgm')
            self.dump_stamps(H)
            H('s_endpgm')
        else:
            for k in range(18):
                self.load_ab(P, WS_AF, k)
            P.wait_all()
            P.barrier()
            P('s_branch L_join')
            for k in range(18):
                self.load_ab(H, WS_AF, k)
            H(f'v_mov_b32 v{t[2]}, 1')
            H.barrier()
            H('s_mov_b64 exec, 0x7f')
            H(f'buffer_store_dword v{t[2]}, v{g.vFA}, {rWS}, 0 offen sc0 sc1')
            H('s_mov_b64 exec, -1')
            H.label('L_join')
            self.stamp(H, 'flag')
            H(f's_and_b32 s28, s{sWG}, 7')
            H('s_cmp_eq_u32 s28, 7')
            H('s_cbranch_scc1 L_fin')
            self.poll(H, g.vPA, rWS, 56, 'L_pollF')
            self.stamp(H, 'polled')
            self.phase2(H)
            self.amp_spin(H)
            H.label('L_fin')
            self.dump_stamps(H)
            H.label('L_exit')
            H('s_endpgm')
        AB.label('L_ab')
        AB(f's_cmp_ge_u32 s{sWG}, {NP1 + NAB}')
        AB('s_cbranch_scc1 L_exit')
        AB2 = self.ab_path(AB)
        if self.two:
            body1 = P.text() + H.text() + AB.text() + AB2.text() + 'L_exit:\n    s_endpgm\nL_codeend:\n'
            K = Prog()
            self.stamp_names1 = list(self.stamp_names)
            self.stamp_names = []
            if self.diag:
                K(f's_memrealtime s[{sST0}:{sST0+1}]')
                self.stamp_names.append('rt')
                self.stamp(K, 't0')
            K(f's_getpc_b64 {sPC}')
            K.label('L_code2_pc')
            K(f's_cmp_ge_u32 s{sWG}, {NP1}')
            K('s_cbranch_scc1 L_exit2')
            K(f's_and_b32 s28, s{sWG}, 7')
            K('s_cmp_eq_u32 s28, 7')
            K('s_cbranch_scc1 L_exit2')
            K('s_load_dwordx2 s[16:17], s[0:1], 56')
            K('s_load_dwordx2 s[20:21], s[0:1], 40')
            self.wave_lane(K)
            self.srd_consts(K, ['WS', 'OUT'])
            self.code_prefetch(K, 'L_code2', 'L_codeend2')
            self.addr_p2(K)
            K.wait_all(vm=False)
            self.stamp(K, 'karg')
            self.phase2(K)
            self.dump_stamps(K, 0x20000)
            K.label('L_exit2')
            K('s_endpgm')
            body2 = K.text() + self.rescale_subs() + 'L_codeend2:\n    s_endpgm\n'
            hdr = (f'; @launch kernel=p1_kernel grid=({NP1+NAB},1,1) block=(256,1,1) lds=163840\n'
                   f'; @launch kernel=p2_kernel grid=({NP1},1,1) block=(256,1,1) lds=163840\n')
            txt = self.head('p1_kernel') + body1 + self.kd('p1_kernel') + self.head('p2_kernel') + body2 + self.kd('p2_kernel')
        else:
            body = P.text() + H.text() + AB.text() + AB2.text() + self.rescale_subs() + 'L_codeend:\n    s_endpgm\n'
            hdr = f'; @launch grid=({NP1+NAB},1,1) block=(256,1,1) lds=163840\n'
            txt = self.head(name1) + body + self.kd(name1)
        return hdr + '.amdgcn_target "amdgcn-amd-amdhsa--gfx950"\n.text\n' + txt


if __name__ == '__main__':
    import argparse
    ap = argparse.ArgumentParser()
    ap.add_argument('-o', default='standalone__video_timesformer__vision.s')
    ap.add_argument('--two', action='store_true')
    ap.add_argument('--diag', default='')
    ap.add_argument('--opt', default='')
    a = ap.parse_args()
    opts = {}
    for kv in a.opt.split(','):
        if kv:
            k, v = kv.split('=')
            opts[k] = int(v) if v.lstrip('-').isdigit() else v
    G = Gen(two=a.two, diag=a.diag.split(',') if a.diag else False, opts=opts)
    s = G.build()
    open(a.o, 'w').write(s)
    print('written', a.o, len(s), 'bytes; stamps', G.stamp_names)
```
